```python
import torch

def _softmax(x, axis=-1):
    return torch.softmax(x, dim=axis)
def _gelu(x):
    return torch.nn.functional.gelu(x, approximate="tanh")
def _silu(x):
    return torch.nn.functional.silu(x)
def _sigmoid(x):
    return torch.sigmoid(x)
def _layernorm(x, axis=-1, eps=1e-5):
    m = x.mean(dim=axis, keepdim=True)
    v = x.var(dim=axis, keepdim=True, unbiased=False)
    return (x - m) / torch.sqrt(v + eps)
def _scatter_add(tgt, idx, src, axis=0):
    return tgt.clone().index_add_(axis, idx, src)
def _segment_sum(src, seg, n):
    out = torch.zeros((n,) + src.shape[1:], dtype=src.dtype)
    return out.index_add_(0, seg, src)
def _pad(x, pw):
    flat = tuple(v for pair in reversed(pw) for v in pair)
    return torch.nn.functional.pad(x, flat)

kernel_name = 'interleave_layers__sliding_local_dilated__glu_gated_reglu__prompt'

def setup_inputs():

    _w = (lambda a: (lambda t: t.to(torch.bfloat16) if t.is_floating_point() else t)(torch.as_tensor(a)))
    def _A_setup():
        B, S, D = 1, 2048, 576
        return {
            "x": _w((lambda *s: torch.randn(*s, dtype=torch.bfloat16) * 0.05)(B, S, D)),
            "wqkv": _w((lambda *s: torch.randn(*s, dtype=torch.bfloat16) * 0.05)(D, 3 * D)),
            "wo": _w((lambda *s: torch.randn(*s, dtype=torch.bfloat16) * 0.05)(D, D)),
        }
    _A_in = _A_setup()

    def _B_setup():
        B, S, D, F = 1, 2048, 576, 4608
        return {
            "x": _w((lambda *s: torch.randn(*s, dtype=torch.bfloat16) * 0.05)(B, S, D)),
            "W_gate": _w((lambda *s: torch.randn(*s, dtype=torch.bfloat16) * 0.8)(D, F) * (2.0 / D) ** 0.5),
            "W_up": _w((lambda *s: torch.randn(*s, dtype=torch.bfloat16) * 0.8)(D, F) * (2.0 / D) ** 0.5),
            "W_down": _w((lambda *s: torch.randn(*s, dtype=torch.bfloat16) * 0.8)(F, D) * (1.0 / F) ** 0.5),
        }
    _B_in = _B_setup()

    return {
        "A_x": _A_in["x"],
        "A_wqkv": _A_in["wqkv"],
        "A_wo": _A_in["wo"],
        "B_x": _B_in["x"],
        "B_W_gate": _B_in["W_gate"],
        "B_W_up": _B_in["W_up"],
        "B_W_down": _B_in["W_down"],
    }

def reference(A_x, A_wqkv, A_wo, B_x, B_W_gate, B_W_up, B_W_down):
    def _A_ref(x, wqkv, wo):
        B, S, D = x.shape
        H = 32; Dh = D // H
        W, dil = 8, 2
        qkv = (lambda x, *d: x.permute(*d))((x @ wqkv).reshape(B, S, 3, H, Dh), 2, 0, 3, 1, 4)
        q, k, v = qkv[0], qkv[1], qkv[2]
        scale = Dh ** -0.5
        pos = torch.arange(S)
        off = torch.arange(W) * dil
        idx = pos[:, None] - off[None, :]
        mask = idx >= 0
        idx_c = torch.where(mask, idx, 0).reshape(-1)
        kg = k[:, :, idx_c, :].reshape(B, H, S, W, Dh)
        vg = v[:, :, idx_c, :].reshape(B, H, S, W, Dh)
        logits = torch.einsum("bhsd,bhswd->bhsw", q, kg) * scale
        logits = torch.where(mask[None, None, :, :], logits, -1e9)
        attn = _softmax(logits, axis=-1)
        o = torch.einsum("bhsw,bhswd->bhsd", attn, vg)
        return (lambda x, *d: x.permute(*d))(o, 0, 2, 1, 3).reshape(B, S, D) @ wo

    def _B_ref(x, W_gate, W_up, W_down):
        gate = torch.einsum("bsd,df->bsf", x, W_gate)
        up = torch.einsum("bsd,df->bsf", x, W_up)
        gate = gate * (lambda x, dt: x.to(dt))(gate > 0, gate.dtype)
        h = gate * up
        return torch.einsum("bsf,fd->bsd", h, W_down)

    x = A_x
    x = x + _A_ref(_layernorm(x, axis=-1), A_wqkv, A_wo)
    x = x + _B_ref(_layernorm(x, axis=-1), B_W_gate, B_W_up, B_W_down)
    x = x + _A_ref(_layernorm(x, axis=-1), A_wqkv, A_wo)
    x = x + _B_ref(_layernorm(x, axis=-1), B_W_gate, B_W_up, B_W_down)
    return x
```

```python
import re

_REG = re.compile(r'^(-|abs\()?([vas])(\d+|\[(\d+):(\d+)\])\)?$')

def parse_reg(tok):
    tok = tok.strip()
    if tok.startswith('|') and tok.endswith('|'): tok = tok[1:-1]
    if tok == 'vcc': return [('s', 106), ('s', 107)]
    if tok == 'vcc_lo': return [('s', 106)]
    if tok == 'vcc_hi': return [('s', 107)]
    if tok == 'exec': return [('s', 126), ('s', 127)]
    if tok == 'm0': return [('s', 124)]
    m = _REG.match(tok)
    if not m: return []
    k = m.group(2)
    if m.group(4) is not None:
        return [(k, i) for i in range(int(m.group(4)), int(m.group(5)) + 1)]
    return [(k, int(m.group(3)))]

TRANS = ('v_exp_f32', 'v_log_f32', 'v_rcp_f32', 'v_rsq_f32', 'v_sqrt_f32', 'v_sin_f32', 'v_cos_f32', 'v_rcp_iflag_f32')

class Ins:
    __slots__ = ('text', 'op', 'dst', 'src', 'kind', 'srcC', 'srcAB', 'passes', 'dpp', 'wide_store_data', 'lds_dma')

def split_ops(rest):
    out, cur, depth = [], '', 0
    for ch in rest:
        if ch in '[(': depth += 1
        if ch in '])': depth -= 1
        if ch == ',' and depth == 0:
            out.append(cur.strip()); cur = ''
        else:
            cur += ch
    if cur.strip(): out.append(cur.strip())
    return out

def decode(text):
    t = text.split(';')[0].strip()
    parts = t.split(None, 1)
    op = parts[0]
    rest = parts[1] if len(parts) > 1 else ''
    ops = split_ops(rest)
    mods = []
    if ops:
        sp = ops[-1].split()
        if len(sp) > 1:
            ops[-1] = sp[0]; mods = sp[1:]
    I = Ins(); I.text = text; I.op = op; I.dst = []; I.src = []; I.srcC = []; I.srcAB = []; I.passes = 0
    I.dpp = any(m.startswith(('row_', 'quad_perm', 'wave_', 'row_bcast')) for m in mods) or op.endswith('_dpp')
    I.wide_store_data = []; I.lds_dma = False
    R = [parse_reg(o) for o in ops]
    base = op.replace('_e32', '').replace('_e64', '').replace('_dpp', '').replace('_sdwa', '')
    if base.startswith('v_mfma'):
        I.kind = 'mfma'; I.dst = R[0]; I.srcAB = R[1] + R[2]; I.srcC = R[3]; I.src = I.srcAB + I.srcC
        I.passes = 8 if '32x32' in base else 4
    elif base.startswith('v_'):
        I.kind = 'valu'
        if base.startswith('v_cmp'):
            I.dst = R[0]; I.src = sum(R[1:], [])
            if base.startswith('v_cmpx'): I.dst = I.dst + parse_reg('exec')
        elif base in ('v_permlane32_swap_b32', 'v_permlane16_swap_b32', 'v_swap_b32'):
            I.dst = R[0] + R[1]; I.src = R[0] + R[1]
        elif base in ('v_add_co_u32', 'v_sub_co_u32', 'v_addc_co_u32', 'v_subb_co_u32', 'v_mad_u64_u32', 'v_div_scale_f32'):
            I.dst = R[0] + R[1]; I.src = sum(R[2:], [])
        elif base in ('v_fmac_f32', 'v_dot2c_f32_bf16', 'v_pk_fmac_f16', 'v_writelane_b32'):
            I.dst = R[0]; I.src = sum(R, [])
        elif base == 'v_nop':
            pass
        else:
            I.dst = R[0]; I.src = sum(R[1:], [])
            if I.dpp: I.src = I.src + R[0]
    elif base.startswith('ds_'):
        I.kind = 'ds'
        if base.startswith(('ds_read', 'ds_bpermute', 'ds_permute', 'ds_swizzle')) or '_rtn' in base:
            I.dst = R[0]; I.src = sum(R[1:], [])
        else:
            I.src = sum(R, [])
    elif base.startswith(('buffer_', 'global_')):
        I.kind = 'vmem'
        if base in ('buffer_wbl2', 'buffer_inv'):
            pass
        elif 'lds' in mods or '_lds_' in base:
            I.src = sum(R, []) + [('s', 124)]; I.lds_dma = True
        elif '_load' in base:
            I.dst = R[0]; I.src = sum(R[1:], [])
        elif '_atomic' in base:
            I.src = sum(R, [])
            if 'sc0' in mods:
                I.dst = R[0]
        else:
            I.src = sum(R, [])
            if 'x4' in base or 'x3' in base:
                I.wide_store_data = R[0] if base.startswith('buffer_') else R[1]
    elif base.startswith('s_'):
        if base.startswith(('s_load', 's_buffer_load', 's_memtime', 's_memrealtime')):
            I.kind = 'smem'; I.dst = R[0]; I.src = sum(R[1:], [])
        else:
            I.kind = 'salu'
            if base.startswith(('s_cmp', 's_waitcnt', 's_barrier', 's_nop', 's_cbranch', 's_branch', 's_setprio', 's_endpgm', 's_sleep', 's_bitcmp', 's_set_gpr')):
                I.src = sum(R, [])
            else:
                I.dst = R[0] if R else []; I.src = sum(R[1:], [])
                if 'saveexec' in base: I.dst = I.dst + parse_reg('exec')
                if base in ('s_addk_i32', 's_mulk_i32'): I.src = I.src + R[0]
    else:
        raise ValueError("unknown instr " + text)
    return I

class Asm:
    def __init__(self):
        self.out = []
        self.reset_state()
        self.nops_inserted = 0
        self.nlab = 0
        self.ninstr = 0
        self.auto = True
    def reset_state(self):
        self.hist = []
        self.pos = 0
        self.vm_issued = 0; self.vm_done = 0
        self.lg_issued = 0; self.lg_done = 0
        self.smem_pending = False
        self.pend = {}
    def raw(self, text):
        self.out.append(text)
    def label(self, name):
        self.out.append(name + ':')
    def newlabel(self, p='L'):
        self.nlab += 1
        return f"{p}_{self.nlab}"
    def _emit(self, text, I, nstates=1):
        self.out.append('  ' + text)
        self.hist.append((I, self.pos))
        self.pos += nstates
        self.ninstr += 1
        if len(self.hist) > 40: self.hist.pop(0)
    def wait(self, vm=None, lg=None):
        parts = []
        if vm is not None and vm >= self.vm_done:
            n = self.vm_issued - vm - 1
            n = min(n, 63)
            parts.append(f"vmcnt({n})"); self.vm_done = max(self.vm_done, self.vm_issued - n)
        if lg is not None and lg >= self.lg_done:
            n = self.lg_issued - lg - 1
            if self.smem_pending: n = 0
            n = min(n, 15)
            parts.append(f"lgkmcnt({n})"); self.lg_done = max(self.lg_done, self.lg_issued - n)
            if n == 0: self.smem_pending = False
        if parts:
            t = "s_waitcnt " + " ".join(parts)
            self._emit(t, decode(t))
            self._clean()
    def wait_all(self, vm=True, lg=True):
        self.wait(vm=self.vm_issued - 1 if (vm and self.vm_issued > self.vm_done) else None,
                  lg=self.lg_issued - 1 if (lg and self.lg_issued > self.lg_done) else None)
    def _clean(self):
        dead = [r for r, (k, s) in self.pend.items() if (k == 'vm' and s < self.vm_done) or (k == 'lg' and s < self.lg_done)]
        for r in dead: del self.pend[r]
    def need(self, I):
        req = 0
        sset = set(I.src); dset = set(I.dst); aset = sset | dset
        for (P, p) in self.hist:
            dist = self.pos - p - 1
            n = 0
            pd = set(P.dst)
            if P.kind == 'valu':
                pv = {r for r in pd if r[0] in 'va'}
                ps = {r for r in pd if r[0] == 's'}
                if I.kind == 'mfma' and pv & sset: n = max(n, 2)
                if I.kind == 'mfma' and (('s', 126) in ps): n = max(n, 4)
                if I.kind == 'vmem' and ps & sset: n = max(n, 5)
                if I.kind == 'valu' and ps & sset:
                    n = max(n, 4 if I.op.startswith(('v_readlane', 'v_writelane')) else 2)
                if I.kind == 'valu' and I.op.startswith('v_div_fmas') and ('s', 106) in ps: n = max(n, 4)
                if I.kind == 'valu' and pv & sset:
                    if I.op.startswith(('v_readfirstlane', 'v_readlane')): n = max(n, 1)
                    if I.op.startswith('v_permlane'): n = max(n, 2)
                    if I.dpp: n = max(n, 2)
                    if P.op.replace('_e32', '').replace('_e64', '') in TRANS: n = max(n, 1)
                    if P.op.startswith('v_dot') and not (I.op == P.op): n = max(n, 3)
                    if P.op.startswith('v_dot') and I.op == P.op:
                        ops = split_ops(I.text.split(None, 1)[1])
                        ab = set(parse_reg(ops[1].split()[0]) + parse_reg(ops[2].split()[0]))
                        if pv & ab: n = max(n, 3)
                if P.op.startswith('v_dot') and I.kind == 'valu' and pv & dset and I.op != P.op: n = max(n, 3)
                if P.op.startswith('v_dot') and I.kind in ('vmem', 'ds') and pv & sset: n = max(n, 3)
                if I.kind == 'valu' and I.dpp and ('s', 126) in ps: n = max(n, 5)
                if I.kind == 'salu' and ps & sset: n = max(n, 1)
            elif P.kind == 'mfma':
                big = {4: 8, 8: 12}[P.passes]
                if I.kind == 'mfma':
                    if pd & set(I.srcAB): n = max(n, big)
                    if pd & set(I.srcC):
                        if not (I.srcC == P.dst and I.passes == P.passes): n = max(n, {4: 6, 8: 10}[P.passes])
                    elif pd & dset:
                        n = max(n, {4: 6, 8: 10}[P.passes])
                elif I.kind in ('valu', 'vmem', 'ds'):
                    if pd & aset: n = max(n, big)
                    if I.kind == 'valu' and set(P.srcC) & dset: n = max(n, {4: 3, 8: 7}[P.passes])
            elif P.kind == 'salu':
                if ('s', 124) in pd and I.lds_dma: n = max(n, 1)
            elif P.kind == 'vmem':
                if P.wide_store_data and set(P.wide_store_data) & dset: n = max(n, 2 if I.kind in ('valu', 'mfma') else 1)
            req = max(req, n - dist)
        return req
    def I(self, text):
        I = decode(text)
        if self.auto:
            wv = wl = None
            for r in set(I.src) | set(I.dst):
                if r in self.pend:
                    k, s = self.pend[r]
                    if k == 'vm': wv = s if wv is None else max(wv, s)
                    else: wl = s if wl is None else max(wl, s)
            if wv is not None or wl is not None: self.wait(vm=wv, lg=wl)
            n = self.need(I)
            while n > 0:
                k = min(n, 16)
                t = f"s_nop {k-1}"
                self._emit(t, decode(t), k); self.nops_inserted += k
                n -= k
        ns = 1
        if I.op == 's_nop': ns = int(text.split()[1]) + 1
        self._emit(text, I, ns)
        tok = None
        if I.kind == 'vmem':
            tok = self.vm_issued; self.vm_issued += 1
            for r in I.dst: self.pend[r] = ('vm', tok)
        elif I.kind == 'ds':
            tok = self.lg_issued; self.lg_issued += 1
            for r in I.dst: self.pend[r] = ('lg', tok)
        elif I.kind == 'smem':
            tok = self.lg_issued; self.lg_issued += 1; self.smem_pending = True
            for r in I.dst: self.pend[r] = ('lg', tok)
        elif I.op == 's_waitcnt':
            m = re.search(r'vmcnt\((\d+)\)', text)
            if m: self.vm_done = max(self.vm_done, self.vm_issued - int(m.group(1)))
            m = re.search(r'lgkmcnt\((\d+)\)', text)
            if m:
                if int(m.group(1)) == 0 or not self.smem_pending:
                    self.lg_done = max(self.lg_done, self.lg_issued - int(m.group(1)))
                if int(m.group(1)) == 0: self.smem_pending = False
            self._clean()
        return tok
    def __call__(self, text):
        tok = None
        for line in text.strip().split('\n'):
            line = line.strip()
            if not line: continue
            if line.endswith(':'): self.label(line[:-1]); continue
            tok = self.I(line)
        return tok
    def text(self):
        return "\n".join(self.out) + "\n"

def v(i, n=1): return f"v{i}" if n == 1 else f"v[{i}:{i+n-1}]"
def a(i, n=1): return f"a{i}" if n == 1 else f"a[{i}:{i+n-1}]"
def s(i, n=1): return f"s{i}" if n == 1 else f"s[{i}:{i+n-1}]"

def kernel_begin(A, name):
    A.raw(f".globl {name}\n.p2align 8\n.type {name},@function")
    A.label(name)
    A.reset_state()

def descriptor(name, vgpr, accum, sgpr=102):
    return f""".p2align 6
.amdhsa_kernel {name}
  .amdhsa_next_free_vgpr {vgpr}
  .amdhsa_next_free_sgpr {sgpr}
  .amdhsa_accum_offset {accum}
  .amdhsa_group_segment_fixed_size 0
  .amdhsa_kernarg_size 80
  .amdhsa_user_sgpr_count 2
  .amdhsa_user_sgpr_kernarg_segment_ptr 1
  .amdhsa_system_sgpr_workgroup_id_x 1
.end_amdhsa_kernel
"""
```

```python
import sys
sys.path.insert(0, "dev")
from asmlib import *

S_, D_, F_ = 2048, 576, 4608
ACT = S_ * D_ * 2
WS_XP   = 0
WS_XN   = WS_XP + ACT
WS_QKV  = WS_XN + ACT
QKV_B   = S_ * 3456
WS_WOF  = WS_QKV + QKV_B
WOF_B   = 576 * 576 * 2
WS_PART = WS_WOF + WOF_B
PART_B  = 16 * ACT
WS_END  = WS_PART + PART_B
KA_X, KA_WQKV, KA_WO, KA_BX, KA_WG, KA_WU, KA_WD, KA_OUT, KA_DBG, KA_WS = [8 * i for i in range(10)]

def srd(A, d, base_lo, off, nbytes):
    if off:
        A(f"s_add_u32 s{d}, s{base_lo}, {off}")
        A(f"s_addc_u32 s{d+1}, s{base_lo+1}, 0")
    else:
        A(f"s_mov_b32 s{d}, s{base_lo}")
        A(f"s_mov_b32 s{d+1}, s{base_lo+1}")
    A(f"s_mov_b32 s{d+2}, {nbytes}")
    A(f"s_mov_b32 s{d+3}, 0x20000")

def unpack_lo(A, d, src): A(f"v_lshlrev_b32 v{d}, 16, v{src}")
def unpack_hi(A, d, src): A(f"v_and_b32 v{d}, 0xffff0000, v{src}")

def wave_reduce_x8(A, x, t):
    A(f"v_add_f32_dpp v{x}, v{x}, v{x} row_ror:8 row_mask:0xf bank_mask:0xf")
    A(f"v_mov_b32 v{t}, v{x}")
    A(f"v_permlane16_swap_b32 v{x}, v{t}")
    A(f"v_add_f32 v{x}, v{x}, v{t}")
    A(f"v_mov_b32 v{t}, v{x}")
    A(f"v_permlane32_swap_b32 v{x}, v{t}")
    A(f"v_add_f32 v{x}, v{x}, v{t}")

def round_bf16(A, x, t=None):
    A(f"v_cvt_pk_bf16_f32 v{x}, 0, v{x}")

def ln_finish(A, X, nel, mean, var, T, outbase):
    round_bf16(A, mean)
    round_bf16(A, var)
    A(f"v_add_f32 v{var}, 0x3727c5ac, v{var}")
    round_bf16(A, var)
    A(f"v_sqrt_f32 v{var}, v{var}")
    round_bf16(A, var)
    A(f"v_rcp_f32 v{var}, v{var}")
    for j in range(0, nel, 2):
        A(f"v_sub_f32 v{X+j}, v{X+j}, v{mean}")
        A(f"v_sub_f32 v{X+j+1}, v{X+j+1}, v{mean}")
        A(f"v_cvt_pk_bf16_f32 v{T}, v{X+j}, v{X+j+1}")
        unpack_lo(A, X + j, T); unpack_hi(A, X + j + 1, T)
        A(f"v_mul_f32 v{X+j}, v{X+j}, v{var}")
        A(f"v_mul_f32 v{X+j+1}, v{X+j+1}, v{var}")
        A(f"v_cvt_pk_bf16_f32 v{outbase+j//2}, v{X+j}, v{X+j+1}")

def gen_rowk(A, name, mode):
    kernel_begin(A, name)
    end = A.newlabel("end")
    nwg = 256 + (72 if mode == 0 else 0)
    A(f"s_cmp_ge_u32 s2, {nwg}\ns_cbranch_scc1 {end}")
    A(f"s_load_dwordx2 s[4:5], s[0:1], {KA_WS}")
    A(f"s_load_dwordx2 s[6:7], s[0:1], {KA_X if mode != 2 else KA_OUT}")
    if mode == 0:
        A(f"s_load_dwordx2 s[28:29], s[0:1], {KA_WO}")
    A("v_lshrrev_b32 v1, 6, v0")
    A("v_and_b32 v2, 63, v0")
    A("s_waitcnt lgkmcnt(0)")
    if mode == 0:
        wot = A.newlabel("wot")
        A(f"s_cmp_ge_u32 s2, 256\ns_cbranch_scc1 {wot}")
    srd(A, 8, 4, WS_XP, ACT)
    srd(A, 12, 4, WS_XN, ACT)
    srd(A, 16, 4, WS_PART, PART_B)
    srd(A, 20, 6, 0, ACT)
    A("v_lshrrev_b32 v3, 5, v0")
    A("v_bfe_u32 v4, v0, 3, 2")
    A("v_and_b32 v5, 7, v0")
    A("s_lshr_b32 s24, s2, 1")
    A("s_and_b32 s25, s2, 1")
    A("v_lshlrev_b32 v6, 10, v3")
    A("v_lshl_add_u32 v6, v4, 8, v6")
    A("v_lshl_add_u32 v6, v5, 4, v6")
    A("s_mul_i32 s26, s24, 18432")
    A("s_lshl_b32 s27, s25, 7")
    A("s_add_u32 s26, s26, s27")
    A("v_add_u32 v6, s26, v6")
    A("s_lshl_b32 s27, s2, 3")
    A("v_add_u32 v7, s27, v5")
    A("v_mul_u32_u24 v7, 1152, v7")
    A("v_lshl_add_u32 v7, v3, 6, v7")
    A("v_lshl_add_u32 v7, v4, 3, v7")
    X = 16
    R = 8
    PB = 32
    if mode == 0:
        A(f"buffer_load_dwordx2 v[{R}:{R+1}], v7, s[20:23], 0 offen")
        A(f"buffer_load_dwordx2 v[{R+2}:{R+3}], v7, s[20:23], 0 offen offset:32")
        for j in range(4):
            unpack_lo(A, X + 2 * j, R + j); unpack_hi(A, X + 2 * j + 1, R + j)
        A(f"buffer_store_dwordx4 v[{R}:{R+3}], v6, s[8:11], 0 offen")
    else:
        A("s_mov_b32 s30, 0")
        for f in range(16):
            A(f"buffer_load_dwordx4 v[{PB+4*f}:{PB+4*f+3}], v6, s[16:19], s30 offen")
            if f < 15: A(f"s_add_u32 s30, s30, {ACT}")
        A(f"buffer_load_dwordx4 v[{R}:{R+3}], v6, s[8:11], 0 offen")
        for j in range(4):
            unpack_lo(A, X + 2 * j, PB + j); unpack_hi(A, X + 2 * j + 1, PB + j)
        for f in range(1, 16):
            for j in range(4):
                unpack_lo(A, 24, PB + 4 * f + j); unpack_hi(A, 25, PB + 4 * f + j)
                A(f"v_add_f32 v{X+2*j}, v{X+2*j}, v24")
                A(f"v_add_f32 v{X+2*j+1}, v{X+2*j+1}, v25")
        for j in range(4):
            A(f"v_cvt_pk_bf16_f32 v24, v{X+2*j}, v{X+2*j+1}")
            unpack_lo(A, X + 2 * j, 24); unpack_hi(A, X + 2 * j + 1, 24)
            unpack_lo(A, 24, R + j); unpack_hi(A, 25, R + j)
            A(f"v_add_f32 v{X+2*j}, v{X+2*j}, v24")
            A(f"v_add_f32 v{X+2*j+1}, v{X+2*j+1}, v25")
            A(f"v_cvt_pk_bf16_f32 v{R+j}, v{X+2*j}, v{X+2*j+1}")
        if mode == 2:
            A(f"buffer_store_dwordx2 v[{R}:{R+1}], v7, s[20:23], 0 offen")
            A(f"buffer_store_dwordx2 v[{R+2}:{R+3}], v7, s[20:23], 0 offen offset:32")
            A(f"s_branch {end}")
        else:
            A(f"buffer_store_dwordx4 v[{R}:{R+3}], v6, s[8:11], 0 offen")
            for j in range(4):
                unpack_lo(A, X + 2 * j, R + j); unpack_hi(A, X + 2 * j + 1, R + j)
    if mode != 2:
        A("v_mul_u32_u24 v26, 48, v5")
        A("v_lshl_add_u32 v27, v1, 2, v26")
        def xreduce(x, area, res):
            wave_reduce_x8(A, x, 25)
            A("s_mov_b64 exec, 0xff")
            A(f"ds_write_b32 v27, v{x} offset:{area}")
            A("s_mov_b64 exec, -1")
            A("s_waitcnt lgkmcnt(0)")
            A("s_barrier")
            A(f"ds_read_b128 v[32:35], v26 offset:{area}")
            A(f"ds_read_b128 v[36:39], v26 offset:{area+16}")
            A(f"ds_read_b32 v40, v26 offset:{area+32}")
            A(f"v_add_f32 v{res}, v32, v33")
            for j in range(34, 41): A(f"v_add_f32 v{res}, v{res}, v{j}")
            A(f"v_mul_f32 v{res}, 0x3ae38e39, v{res}")
        A(f"v_add_f32 v24, v{X}, v{X+1}")
        for j in range(2, 8): A(f"v_add_f32 v24, v24, v{X+j}")
        xreduce(24, 0, 28)
        A(f"v_sub_f32 v25, v{X}, v28")
        A("v_mul_f32 v24, v25, v25")
        for j in range(1, 8):
            A(f"v_sub_f32 v25, v{X+j}, v28")
            A("v_fmac_f32 v24, v25, v25")
        xreduce(24, 512, 29)
        ln_finish(A, X, 8, 28, 29, 24, 12)
        A("buffer_store_dwordx4 v[12:15], v6, s[12:15], 0 offen")
    if mode == 0:
        A(f"s_branch {end}")
        A.label(wot)
        A.reset_state()
        srd(A, 8, 28, 0, WOF_B)
        srd(A, 12, 4, WS_WOF, WOF_B)
        A("s_sub_u32 s24, s2, 256")
        A("s_mul_i32 s24, s24, 9")
        A("v_readfirstlane_b32 s25, v1")
        A("s_add_u32 s24, s24, s25")
        A("s_and_b32 s26, s24, 1")
        A("s_lshr_b32 s27, s24, 1")
        A("s_mul_i32 s30, s27, 3641")
        A("s_lshr_b32 s30, s30, 16")
        A("s_mul_i32 s31, s30, 18")
        A("s_sub_u32 s31, s27, s31")
        A("s_mul_i32 s31, s31, 36864")
        A("s_lshl_b32 s30, s30, 6")
        A("s_add_u32 s31, s31, s30")
        A("s_lshl_b32 s26, s26, 5")
        A("s_add_u32 s31, s31, s26")
        A("v_lshrrev_b32 v3, 4, v2")
        A("v_mul_u32_u24 v3, 9216, v3")
        A("v_and_b32 v4, 15, v2")
        A("v_lshl_add_u32 v3, v4, 1, v3")
        A("v_add_u32 v4, 4608, v3")
        for j in range(8):
            A(f"buffer_load_ushort v{16+j}, v{3 if j < 4 else 4}, s[8:11], s31 offen offset:{(j&3)*1152}")
        A("v_lshlrev_b32 v5, 4, v2")
        A("s_lshl_b32 s24, s24, 10")
        for j in range(4):
            A(f"v_lshl_or_b32 v{8+j}, v{17+2*j}, 16, v{16+2*j}")
        A("buffer_store_dwordx4 v[8:11], v5, s[12:15], s24 offen")
    A.label(end)
    A("s_endpgm")
    return descriptor(name, 96, 96)

XV = 224
def xreg(mt, ks):
    idx = (ks * 4 + mt) * 4
    return a(idx, 4) if idx < 256 else v(XV + idx - 256, 4)

def tr_addr_regs(A, dst, tiles_expr, lane, T):
    t0, t1, t2 = T, T + 1, T + 2
    A(f"v_lshrrev_b32 v{t0}, 2, v{lane}")
    A(f"v_and_b32 v{t1}, 6, v{t0}")
    A(f"v_lshlrev_b32 v{t1}, 4, v{t1}")
    A(f"v_lshlrev_b32 v{t0}, 7, v{t0}")
    A(f"v_and_b32 v{t2}, 3, v{lane}")
    A(f"v_lshl_add_u32 v{t0}, v{t2}, 3, v{t0}")
    for d, te in zip(dst, tiles_expr):
        if isinstance(te, int):
            A(f"v_xor_b32 v{d}, {te*32}, v{t1}")
        else:
            A(f"v_xor_b32 v{d}, s{te[1]}, v{t1}")
        A(f"v_add_u32 v{d}, v{d}, v{t0}")

def dma_voff(A, dst, lane, pitch, T):
    A(f"v_lshrrev_b32 v{T}, 3, v{lane}")
    A(f"v_and_b32 v{T+1}, 6, v{T}")
    A(f"v_xor_b32 v{T+1}, v{T+1}, v{lane}")
    A(f"v_and_b32 v{T+1}, 7, v{T+1}")
    A(f"v_mul_u32_u24 v{dst}, {pitch}, v{T}")
    A(f"v_lshl_add_u32 v{dst}, v{T+1}, 4, v{dst}")

def gen_k1(A, name):
    kernel_begin(A, name)
    end = A.newlabel("end")
    A(f"s_cmp_ge_u32 s2, 216\ns_cbranch_scc1 {end}")
    A(f"s_load_dwordx2 s[4:5], s[0:1], {KA_WS}")
    A(f"s_load_dwordx2 s[6:7], s[0:1], {KA_WQKV}")
    A("v_lshrrev_b32 v1, 6, v0")
    A("v_and_b32 v2, 63, v0")
    A("v_readfirstlane_b32 s24, v1")
    A("s_and_b32 s25, s2, 7")
    A("s_lshr_b32 s26, s2, 3")
    dma_voff(A, 3, 2, 3456, 10)
    A("v_lshlrev_b32 v4, 4, v2")
    tr_addr_regs(A, [5, 6, 7, 8], [0, 1, 2, 3], 2, 10)
    A("v_and_b32 v10, 15, v2\nv_mul_u32_u24 v9, 3456, v10\nv_lshrrev_b32 v10, 4, v2\nv_lshl_add_u32 v9, v10, 3, v9")
    A("s_waitcnt lgkmcnt(0)")
    srd(A, 8, 4, WS_XN, ACT)
    srd(A, 12, 6, 0, 576 * 3456)
    srd(A, 16, 4, WS_QKV, QKV_B)
    A("s_lshl_b32 s27, s25, 4\ns_lshl_b32 s28, s24, 2\ns_add_u32 s27, s27, s28")
    for m in range(4):
        A(f"s_add_u32 s28, s27, {m}")
        A(f"s_mul_i32 s{32+m}, s28, 18432")
    A("s_mul_i32 s28, s24, 27648\ns_lshl_b32 s29, s26, 7\ns_add_u32 s28, s28, s29")
    A("s_lshl_b32 s30, s24, 10")
    A("s_mul_i32 s31, s27, 55296\ns_add_u32 s31, s31, s29")
    dtok = {}
    def issue(ks):
        A(f"s_add_u32 m0, s30, {ks*4096}")
        dtok[ks] = A("buffer_load_dwordx4 v3, s[12:15], s28 offen lds")
        if ks < 17: A(f"s_add_u32 s28, s28, {32*3456}")
        for m in range(4):
            A(f"buffer_load_dwordx4 {xreg(m, ks)}, v4, s[8:11], s{32+m} offen offset:{(ks%4)*1024}")
            if ks % 4 == 3: A(f"s_add_u32 s{32+m}, s{32+m}, 4096")
    for ks in range(12): issue(ks)
    ACC = 16
    FR = 80
    nfr = 0
    def read_frag(ks, t):
        nonlocal nfr
        sl = FR + 4 * (nfr % 8); nfr += 1
        off = ks * 4096
        if off >= 32768 and ks >= 9: off -= 36864
        A(f"ds_read_b64_tr_b16 v[{sl}:{sl+1}], v{5+t} offset:{off}")
        A(f"ds_read_b64_tr_b16 v[{sl+2}:{sl+3}], v{5+t} offset:{off+2048}")
        return sl
    seq = [(ks, t) for ks in range(18) for t in range(4)]
    slots = {}
    def pre(i):
        if i >= len(seq): return
        ks, t = seq[i]
        if t == 0 and ks % 3 == 0:
            A.wait(vm=dtok[ks + 2])
            A("s_barrier")
            if ks == 9:
                for j in range(4): A(f"v_add_u32 v{5+j}, 36864, v{5+j}")
        slots[i] = read_frag(ks, t)
    D = 4
    for i in range(D): pre(i)
    for i, (ks, t) in enumerate(seq):
        if t == 0 and ks + 12 < 18: issue(ks + 12)
        for m in range(4):
            acc = ACC + (t * 4 + m) * 4
            c = "0" if ks == 0 else v(acc, 4)
            A(f"v_mfma_f32_16x16x32_bf16 {v(acc,4)}, {v(slots[i],4)}, {xreg(m, ks)}, {c}")
            if m == 0: pre(i + D)
    for m in range(4):
        for t in range(4):
            acc = ACC + (t * 4 + m) * 4
            A(f"v_cvt_pk_bf16_f32 v{acc}, v{acc}, v{acc+1}")
            A(f"v_cvt_pk_bf16_f32 v{acc+1}, v{acc+2}, v{acc+3}")
            A(f"buffer_store_dwordx2 v[{acc}:{acc+1}], v9, s[16:19], s31 offen offset:{32*t}")
        if m < 3: A("s_add_u32 s31, s31, 55296")
    A.label(end)
    A("s_endpgm")
    return descriptor(name, 512, 256)

def gen_k3(A, name, D=4, BI=12, store_mods="", NSLOT=40):
    kernel_begin(A, name)
    end = A.newlabel("end")
    A(f"s_cmp_ge_u32 s2, 256\ns_cbranch_scc1 {end}")
    A(f"s_load_dwordx2 s[4:5], s[0:1], {KA_WS}")
    A(f"s_load_dwordx4 s[40:43], s[0:1], {KA_WG}")
    A(f"s_load_dwordx2 s[44:45], s[0:1], {KA_WD}")
    A("v_lshrrev_b32 v1, 6, v0")
    A("v_and_b32 v2, 63, v0")
    A("v_readfirstlane_b32 s24, v1")
    A("s_and_b32 s25, s2, 7\ns_lshl_b32 s25, s25, 1\ns_lshr_b32 s26, s2, 3\ns_and_b32 s27, s26, 1\ns_add_u32 s25, s25, s27")
    A("s_lshr_b32 s26, s26, 1")
    A("s_and_b32 s28, s24, 1")
    A("s_lshr_b32 s29, s24, 1")
    V_GU, V_D, V_L16, V_HG = 3, 4, 5, 6
    V_W = 8
    V_H = 14
    V_XR = 17
    V_HW = 20
    TMP = 24
    P = 32
    E = 96
    T = 128
    T1 = T
    FR = 160
    T2 = 192
    NFR = 8
    dma_voff(A, V_GU, 2, 9216, TMP)
    dma_voff(A, V_D, 2, 1152, TMP)
    A(f"v_lshlrev_b32 v{V_L16}, 4, v2")
    A(f"v_lshrrev_b32 v{TMP}, 2, v2")
    A(f"v_lshrrev_b32 v{TMP+1}, 3, v2\nv_and_b32 v{TMP+1}, 2, v{TMP+1}")
    A(f"v_xor_b32 v{TMP+1}, v{TMP+1}, v2\nv_and_b32 v{TMP+1}, 3, v{TMP+1}")
    A(f"v_mul_u32_u24 v{V_HG}, 9216, v{TMP}\nv_lshl_add_u32 v{V_HG}, v{TMP+1}, 4, v{V_HG}")
    A("s_lshl_b32 s30, s29, 6\ns_add_u32 s31, s30, 32")
    tr_addr_regs(A, [V_W, V_W + 1], [('s', 30), ('s', 31)], 2, TMP)
    A(f"v_lshrrev_b32 v{TMP}, 2, v2\nv_lshlrev_b32 v{TMP}, 6, v{TMP}")
    A(f"v_bfe_u32 v{TMP+1}, v2, 4, 1\nv_xor_b32 v{TMP+1}, s29, v{TMP+1}\nv_lshl_add_u32 v{TMP}, v{TMP+1}, 5, v{TMP}")
    A(f"v_and_b32 v{TMP+1}, 3, v2\nv_lshl_add_u32 v{V_H}, v{TMP+1}, 3, v{TMP}")
    A(f"s_lshl_b32 s30, s28, 12\nv_add_u32 v{V_XR}, s30, v{V_L16}")
    for w in (1, 2):
        A(f"v_add_u32 v{V_W+2*w}, {65536*w}, v{V_W}\nv_add_u32 v{V_W+2*w+1}, {65536*w}, v{V_W+1}")
        A(f"v_add_u32 v{V_H+w}, {65536*w}, v{V_H}\nv_add_u32 v{V_XR+w}, {65536*w}, v{V_XR}")
    A(f"s_lshl_b32 s30, s24, 12\ns_add_u32 s30, s30, 65536\nv_add_u32 v{V_HW}, s30, v{V_L16}")
    A(f"s_lshl_b32 s30, s29, 3\nv_add_u32 v{V_HW+1}, s30, v{V_XR+1}")
    A("s_mov_b32 s33, 0xffff0000")
    A("s_lshl_b32 s32, s24, 10")
    A("s_waitcnt lgkmcnt(0)")
    srd(A, 8, 4, WS_XN, ACT)
    srd(A, 12, 40, 0, 576 * 9216)
    srd(A, 16, 42, 0, 576 * 9216)
    srd(A, 20, 44, 0, 4608 * 1152)
    srd(A, 48, 4, WS_PART, PART_B)
    A("s_cmp_eq_u32 s29, 0\ns_cselect_b32 s52, s40, s42\ns_cselect_b32 s53, s41, s43")
    A(f"s_mov_b32 s54, {576*9216}\ns_mov_b32 s55, 0x20000")
    A("s_mul_i32 s35, s25, 576\ns_lshl_b32 s30, s27, 6")
    A(f"s_mul_i32 s31, s24, {8*9216}\ns_add_u32 s30, s30, s31\nv_add_u32 v{V_GU}, s30, v{V_GU}")
    A("s_xor_b32 s30, s27, 1\ns_lshl_b32 s30, s30, 9")
    A(f"s_mul_i32 s31, s28, {16*9216}\ns_add_u32 s30, s30, s31\nv_add_u32 v{V_HG}, s30, v{V_HG}")
    A("s_mul_i32 s30, s25, 288\ns_lshl_b32 s31, s24, 3\ns_add_u32 s30, s30, s31")
    A("s_lshl_b32 s31, s27, 5\ns_add_u32 s37, s30, s31\ns_mul_i32 s37, s37, 1152")
    A("s_xor_b32 s31, s27, 1\ns_lshl_b32 s31, s31, 8\ns_add_u32 s38, s30, s31\ns_mul_i32 s38, s38, 1152")
    A("s_lshl_b32 s30, s26, 3\ns_add_u32 s31, s30, s24\ns_mul_i32 s39, s31, 18432")
    A(f"s_lshl_b32 s31, s28, 2\ns_add_u32 s31, s30, s31\ns_mul_i32 s31, s31, 18432\ns_mul_i32 s46, s25, {ACT}\ns_add_u32 s46, s46, s31")
    A("s_lshl_b32 s31, s29, 10\ns_add_u32 s46, s46, s31")

    SK = 60; SD = 78
    A(f"s_mov_b32 s{SK}, s35")
    for ks in range(1, 18): A(f"s_add_u32 s{SK+ks}, s{SK+ks-1}, {32*9216}")
    A(f"s_mov_b32 s{SD}, s37")
    for kk in range(1, 8): A(f"s_add_u32 s{SD+kk}, s{SD+kk-1}, {32*1152}")
    A(f"s_mov_b32 s{SD+8}, s38")
    items = []
    for g in range(4):
        for ks in range(18):
            for it in range(4):
                items.append(dict(unit=('G' if it < 2 else 'U', g, ks), kind='W', tile=it & 1,
                                  acc=[P + (it * 4 + m) * 4 for m in range(4)], b=[xreg(m, ks) for m in range(4)],
                                  first=ks == 0, last=ks == 17, grp=('g', g), it=it))
    hg0 = len(items)
    for ks in range(18):
        for it in range(2):
            items.append(dict(unit=('HG', ks), kind='H', tile=it, acc=[P + (it * 4 + m) * 4 for m in range(4)],
                              b=[xreg(m, ks) for m in range(4)], first=ks == 0, last=ks == 17, grp=('h',), it=it))
    p20 = len(items)
    order = [(0, kk) for kk in range(6)] + [(1, kk) for kk in range(6)] + [(0, 6), (0, 7), (1, 6), (1, 7)] + [(2, kk) for kk in range(6)] + \
            [(0, 8), (1, 8), (2, 6), (2, 7), (2, 8)] + [(ng, kk) for ng in range(3, 9) for kk in range(9)]
    sets = [P + 32, E, P]
    for (ng, kk) in order:
        for tt in range(2):
            items.append(dict(unit=('D', ng, kk), kind='W', tile=tt, acc=[sets[ng % 3] + (m * 2 + tt) * 4 for m in range(4)],
                              b=[xreg(m, kk) for m in range(4)], first=kk == 0, last=kk == 8, grp=('n', ng), it=tt))
    N = len(items)
    bpos = [0, 4, 8, 12, 18] + list(range(24, N, BI))
    def interval_of_read(i):
        k = 0
        for j, p in enumerate(bpos):
            if p <= i: k = j
        return k
    def rel_after(i):
        for k, p in enumerate(bpos):
            if p - D >= i: return k
        return 10 ** 6
    units = {}
    ulist = []
    def touch(u, ri, ci, pair=False):
        if u not in units:
            units[u] = dict(fr=interval_of_read(ri), rel=0, pair=pair, name=u); ulist.append(u)
        units[u]['rel'] = max(units[u]['rel'], rel_after(ci))
    xread_at = {}
    for i, itx in enumerate(items):
        if i < 72 - 4:
            ks = i // 4 + 1; m = i % 4
            if i == 0: touch(('X', 0), 0, 1, True)
            touch(itx['unit'], i, i)
            touch(('X', ks), i, ks * 4 + 1, True)
            xread_at[i] = (ks, m)
        else:
            touch(itx['unit'], i, i)
    uidx = {u: i for i, u in enumerate(ulist)}
    ulist = sorted(ulist, key=lambda u: (units[u]['fr'], uidx[u]))
    HBASE = NSLOT - 18
    assert HBASE * 4096 >= 65536 and (NSLOT * 4096 - 65536) <= 2 * 65536
    slot_deadline = {}
    for g in range(5):
        endi = (g + 1) * 72 if g < 4 else p20
        k = interval_of_read(endi + D)
        for sidx in range(4 if g < 4 else 2):
            slot_deadline[HBASE + 4 * g + sidx] = k
    hread_q = [(kk, m) for kk in range(9) for m in range(4)]
    hread_done = set()
    h_release = rel_after(p20 + 2 * order.index((0, 8)) + 1)
    free_at = {sl: 0 for sl in range(NSLOT)}
    issue_in = {}
    nxt = 0
    for k in range(-1, len(bpos)):
        lst = []
        while nxt < len(ulist):
            u = units[ulist[nxt]]
            kk_ = max(k, 0)
            def ok(sl):
                if free_at[sl] > kk_: return False
                if sl in slot_deadline and kk_ < h_release and u['rel'] > slot_deadline[sl]: return False
                return True
            if u['pair']:
                c = [sl for sl in range(0, NSLOT, 2) if ok(sl) and ok(sl + 1)]
            else:
                c = [sl for sl in range(NSLOT) if ok(sl)]
            if not c: break
            c.sort(key=lambda sl: (0 if (sl in slot_deadline and kk_ < h_release) else 1, free_at[sl], sl))
            sl = c[0]
            u['slot'] = sl
            free_at[sl] = u['rel']
            if u['pair']: free_at[sl + 1] = u['rel']
            assert k < u['fr'], (u, k)
            lst.append(u); nxt += 1
        issue_in[k] = lst
    assert nxt == len(ulist)
    lead = {}
    for k, lst in issue_in.items():
        for u in lst: lead.setdefault(u['fr'] - k, 0); lead[u['fr'] - k] += 1
    A.raw(f"; lead histogram (intervals): {sorted(lead.items())}")

    def dma_parts(u):
        n = u['name']; sl = u['slot']
        def one(voff, srdn, sreg, imm, lds, pre=()):
            if lds < imm:
                pre = [f"s_add_u32 s47, s{sreg}, {imm}"]; sreg = 47; imm = 0
            return (list(pre) + [f"s_add_u32 m0, s32, {(lds - imm) & 0xffffffff}"],
                    f"buffer_load_dwordx4 v{voff}, s[{srdn}:{srdn+3}], s{sreg} offen offset:{imm} lds", u)
        if n[0] == 'X':
            return [one(V_L16, 8, 47, 0, sl * 4096, [f"s_add_u32 s47, s39, {n[1]*1024}"]),
                    one(V_L16, 8, 47, 0, sl * 4096 + 4096, [f"s_add_u32 s47, s39, {n[1]*1024 + 4*18432}"])]
        elif n[0] in 'GU':
            return [one(V_GU, 12 if n[0] == 'G' else 16, SK + n[2], n[1] * 128, sl * 4096)]
        elif n[0] == 'HG':
            return [one(V_HG, 52, SK + n[1], 0, sl * 4096)]
        else:
            return [one(V_D, 20, SD + n[2], n[1] * 128, sl * 4096)]
    def dma_pre(p):
        for x in p[0]: A(x)
    def dma_ld(p):
        p[2]['tok'] = A(p[1])
    def dma(p):
        dma_pre(p); dma_ld(p)
    def lds_rd(base, addr, stride=1):
        w = addr >> 16
        return base + w * stride, addr & 0xffff
    cur_int = [-1]
    dma_q = []
    hw_tok = {}; hw_int = {}; hw_cnt = {}
    slots = {}
    def pre(i):
        if i >= N: return
        if i in bpos:
            k = bpos.index(i)
            assert not dma_q, ("dma queue not drained", i, len(dma_q))
            toks = [u['tok'] for u in units.values() if u['fr'] == k]
            if toks: A.wait(vm=max(toks))
            if hw_tok: A.wait(lg=max(hw_tok.values()))
            A("s_barrier")
            cur_int[0] = k
            for u in issue_in[k]: dma_q.extend(dma_parts(u))
        itx = items[i]; u = units[itx['unit']]
        sl = FR + 4 * (i % NFR); slots[i] = sl
        if itx['kind'] == 'W':
            r, off = lds_rd(V_W + itx['tile'], u['slot'] * 4096, 2)
            A(f"ds_read_b64_tr_b16 v[{sl}:{sl+1}], v{r} offset:{off}")
            A(f"ds_read_b64_tr_b16 v[{sl+2}:{sl+3}], v{r} offset:{off+2048}")
        else:
            r, off = lds_rd(V_H, u['slot'] * 4096 + itx['tile'] * 2048)
            A(f"ds_read_b64_tr_b16 v[{sl}:{sl+1}], v{r} offset:{off}")
            A(f"ds_read_b64_tr_b16 v[{sl+2}:{sl+3}], v{r} offset:{off+1024}")
    def extra_reads(i):
        if i in xread_at:
            ks, m = xread_at[i]
            r, off = lds_rd(V_XR, units[('X', ks)]['slot'] * 4096 + m * 1024)
            A(f"ds_read_b128 {xreg(m, ks)}, v{r} offset:{off}")
    def h_read(i):
        if not hread_q: return False
        kk, m = hread_q[0]
        g = kk >> 1
        if i <= hg0 + 2 * kk + 1: return False
        if hw_cnt.get(g, 0) < 4 or hw_int[g] >= cur_int[0]: return False
        hread_q.pop(0); hread_done.add((kk, m))
        addr = (HBASE + 4 * g) * 4096 + ((kk & 1) * 8192 if kk < 8 else 0) + m * 1024
        r, off = lds_rd(V_XR, addr)
        A(f"ds_read_b128 {xreg(m, kk)}, v{r} offset:{off}")
        return True
    defer = []
    timed = {}
    def sched_epilogue(i, itx):
        gk = itx['grp']
        if gk[0] == 'g' and gk[1] > 0: assert hw_cnt.get(gk[1] - 1, 0) == 4
        for m in range(4):
            acc = itx['acc'][m]
            at = i * 4 + m + 7
            if gk[0] == 'g':
                it = itx['it']
                d = T + (16 if it >= 2 else 0) + m * 4 + (it & 1) * 2
            elif gk[0] == 'h':
                d = T2 + (16 if itx['it'] else 0) + m * 4
            else:
                d = acc - itx['it'] * 4 + itx['it'] * 2
            timed.setdefault(at, []).append(f"v_cvt_pk_bf16_f32 v{d}, v{acc}, v{acc+1}")
            timed.setdefault(at, []).append(f"v_cvt_pk_bf16_f32 v{d+1}, v{acc+2}, v{acc+3}")
        lastit = {'g': 3, 'h': 1, 'n': 1}[gk[0]]
        if itx['it'] == lastit:
            timed.setdefault(i * 4 + 3 + 8, []).append(('defer', gk))
    def push_defer(gk):
        if gk[0] in 'gh':
            g = gk[1] if gk[0] == 'g' else 4
            nd = 4 if g < 4 else 2
            T = T1 if g < 4 else T2
            for m in range(4):
                for j in range(nd):
                    gr = T + m * 4 + j; ur = gr + 16
                    t0 = TMP + (j & 1) * 4
                    defer.extend([f"v_pk_max_i16 v{gr}, v{gr}, 0",
                                  f"v_lshlrev_b32 v{t0+1}, 16, v{ur}", f"v_and_b32 v{t0+3}, s33, v{ur}",
                                  f"v_lshlrev_b32 v{t0}, 16, v{gr}", f"v_and_b32 v{t0+2}, s33, v{gr}",
                                  f"v_mul_f32 v{t0}, v{t0}, v{t0+1}", f"v_mul_f32 v{t0+2}, v{t0+2}, v{t0+3}",
                                  f"v_cvt_pk_bf16_f32 v{gr}, v{t0}, v{t0+2}"])
                off = (HBASE + 4 * g) * 4096 + m * 1024 - 65536
                if g < 4: defer.append(('hw', g, off, f"ds_write_b128 v{{r}}, v[{T+m*4}:{T+m*4+3}] offset:{{o}}", V_HW))
                else: defer.append(('hw', g, off, f"ds_write_b64 v{{r}}, v[{T+m*4}:{T+m*4+1}] offset:{{o}}", V_HW + 1))
        else:
            ng = gk[1]
            for m in range(4):
                b = sets[ng % 3] + m * 8
                defer.append(f"s_add_u32 s56, s46, {m*18432 + ng*2048}")
                defer.append(f"buffer_store_dwordx4 v[{b}:{b+3}], v{V_L16}, s[48:51], s56 offen {store_mods}")
            defer.append(('done', ng))
    hw_hi = [False]
    stored = set()
    def emit_defer(x):
        if isinstance(x, tuple) and x[0] == 'done':
            stored.add(x[1])
        elif isinstance(x, tuple):
            _, g, off, fmt, r = x
            if off >= 65536 and not hw_hi[0]:
                A(f"v_add_u32 v{V_HW}, 65536, v{V_HW}\nv_add_u32 v{V_HW+1}, 65536, v{V_HW+1}"); hw_hi[0] = True
            if hw_hi[0]: off -= 65536
            assert 0 <= off < 65536
            assert cur_int[0] >= slot_deadline[HBASE + 4 * g]
            hw_tok[g] = A(fmt.format(r=r, o=off)); hw_int[g] = cur_int[0]; hw_cnt[g] = hw_cnt.get(g, 0) + 1
        else:
            A(x)
    for u in issue_in[-1]:
        for p in dma_parts(u): dma(p)
    for i in range(D):
        pre(i)
        if i == 0:
            for m in range(4):
                r, off = lds_rd(V_XR, units[('X', 0)]['slot'] * 4096 + m * 1024)
                A(f"ds_read_b128 {xreg(m, 0)}, v{r} offset:{off}")
        extra_reads(i)
        while dma_q and (i + 1) in bpos: dma(dma_q.pop(0))
    half = None
    over = 0
    for i, itx in enumerate(items):
        if itx['last']: sched_epilogue(i, itx)
        for m in range(4):
            acc = itx['acc'][m]
            c = "0" if itx['first'] else v(acc, 4)
            if itx['grp'][0] == 'n':
                assert (itx['unit'][2], m) in hread_done, (i, itx['unit'], m)
                assert itx['grp'][1] < 3 or itx['grp'][1] - 3 in stored
            A(f"v_mfma_f32_16x16x32_bf16 {v(acc,4)}, {v(slots[i],4)}, {itx['b'][m]}, {c}")
            n0 = A.ninstr
            if half is not None:
                dma_ld(half); half = None
            for x in timed.pop(i * 4 + m, []):
                if isinstance(x, tuple): push_defer(x[1])
                else: A(x)
            if m == 0: pre(i + D)
            if m == 1:
                nb = min([p for p in bpos if p > i + D] + [10 ** 6])
                left = nb - (i + D)
                nd = -(-len(dma_q) // max(left, 1)) if dma_q else 0
                for _ in range(nd - 1): dma(dma_q.pop(0))
                if nd:
                    half = dma_q.pop(0); dma_pre(half)
            if m == 2: extra_reads(i + D)
            cap = 2 if m < 3 else 1
            while A.ninstr - n0 < cap and h_read(i): pass
            while defer and A.ninstr - n0 < cap: emit_defer(defer.pop(0))
            over += max(0, A.ninstr - n0 - cap)
    for k in sorted(timed):
        for x in timed[k]:
            if isinstance(x, tuple): push_defer(x[1])
            else: A(x)
    while defer: emit_defer(defer.pop(0))
    A.label(end)
    A("s_endpgm")
    return descriptor(name, 512, 256)

import struct
def f32hex(x): return "0x%08x" % struct.unpack("<I", struct.pack("<f", x))[0]
def attn_core(A, VA, KP, VOFF, Q, ROWG, SMASK, SP, R):
    B = [R + 10 * i for i in range(4)]
    LG = R + 40
    OA = R + 48
    T = R + 66
    A(f"s_mov_b32 s{SP}, 0x05040100\ns_mov_b32 s{SP+1}, 0x07060302\ns_mov_b32 s{SP+2}, {f32hex(1.4426950408889634)}")
    def load9(dst, byteoff):
        A(f"v_add_u32 v{T+7}, {byteoff}, v{VA}")
        for d in range(0, 8, 2):
            A(f"ds_read2_b32 v[{dst+d}:{dst+d+1}], v{T+7} offset0:{d} offset1:{d+1}")
        A(f"ds_read_b32 v{dst+8}, v{T+7} offset:32")
    def koff(j): return (14 - 2 * j) * KP
    for j in range(4): load9(B[j], koff(j))
    for j in range(0, 8, 2):
        b0, b1 = B[j % 4], B[(j + 1) % 4]
        for d in range(9):
            for (jj, b) in ((j, b0), (j + 1, b1)):
                A(f"v_dot2_f32_bf16 v{LG+jj}, v{Q+d}, v{b+d}, " + ("0" if d == 0 else f"v{LG+jj}"))
        if j < 4:
            load9(b0, koff(j + 4)); load9(b1, koff(j + 5))
        else:
            load9(b0, koff(j - 4) + VOFF); load9(b1, koff(j - 3) + VOFF)
    for j in range(8): round_bf16(A, LG + j)
    for j in range(8): A(f"v_mul_f32 v{LG+j}, {f32hex(18 ** -0.5)}, v{LG+j}")
    for j in range(8): round_bf16(A, LG + j)
    nm = A.newlabel("nomask")
    A(f"s_cmp_eq_u32 s{SMASK}, 0\ns_cbranch_scc1 {nm}")
    A(f"v_mov_b32 v{T}, 0xce6e0000")
    for j in range(1, 8):
        A(f"v_cmp_gt_u32 vcc, {2*j}, v{ROWG}")
        A(f"v_cndmask_b32 v{LG+j}, v{LG+j}, v{T}, vcc")
    A.label(nm)
    A(f"v_max3_f32 v{T}, v{LG}, v{LG+1}, v{LG+2}")
    A(f"v_max3_f32 v{T+1}, v{LG+3}, v{LG+4}, v{LG+5}")
    A(f"v_max3_f32 v{T}, v{T}, v{LG+6}, v{LG+7}")
    A(f"v_max_f32 v{T}, v{T}, v{T+1}")
    for j in range(8): A(f"v_sub_f32 v{LG+j}, v{LG+j}, v{T}")
    for j in range(8): A(f"v_mul_f32 v{LG+j}, s{SP+2}, v{LG+j}")
    for j in range(8): A(f"v_exp_f32 v{LG+j}, v{LG+j}")
    A(f"v_add_f32 v{T}, v{LG}, v{LG+1}\nv_add_f32 v{T+1}, v{LG+2}, v{LG+3}\nv_add_f32 v{T+2}, v{LG+4}, v{LG+5}\nv_add_f32 v{T+3}, v{LG+6}, v{LG+7}")
    A(f"v_add_f32 v{T}, v{T}, v{T+1}\nv_add_f32 v{T+2}, v{T+2}, v{T+3}\nv_add_f32 v{T}, v{T}, v{T+2}")
    A(f"v_rcp_f32 v{T}, v{T}")
    for j in range(8): A(f"v_mul_f32 v{LG+j}, v{LG+j}, v{T}")
    for p in range(4): A(f"v_cvt_pk_bf16_f32 v{LG+p}, v{LG+2*p}, v{LG+2*p+1}")
    for p in range(4):
        b0, b1 = B[(2 * p) % 4], B[(2 * p + 1) % 4]
        for d in range(9):
            t = T + (d % 3) * 2
            A(f"v_perm_b32 v{t}, v{b1+d}, v{b0+d}, s{SP}")
            A(f"v_perm_b32 v{t+1}, v{b1+d}, v{b0+d}, s{SP+1}")
            A(f"v_dot2_f32_bf16 v{OA+2*d}, v{t}, v{LG+p}, " + ("0" if p == 0 else f"v{OA+2*d}"))
            A(f"v_dot2_f32_bf16 v{OA+2*d+1}, v{t+1}, v{LG+p}, " + ("0" if p == 0 else f"v{OA+2*d+1}"))
        if p < 2:
            load9(b0, koff(2 * p + 4) + VOFF); load9(b1, koff(2 * p + 5) + VOFF)
    for d in range(9): A(f"v_cvt_pk_bf16_f32 v{Q+d}, v{OA+2*d}, v{OA+2*d+1}")

def wave_reduce_q(A, x, t):
    A(f"v_mov_b32 v{t}, v{x}")
    A(f"v_permlane16_swap_b32 v{x}, v{t}")
    A(f"v_add_f32 v{x}, v{x}, v{t}")
    A(f"v_mov_b32 v{t}, v{x}")
    A(f"v_permlane32_swap_b32 v{x}, v{t}")
    A(f"v_add_f32 v{x}, v{x}, v{t}")

K2_O = 73728
K2_ST = K2_O + 16 * 1168
K2_LDS = K2_ST + 2 * 768
def gen_k2(A, name, NPF=15, RING=26):
    kernel_begin(A, name)
    end = A.newlabel("end")
    A(f"s_cmp_ge_u32 s2, 128\ns_cbranch_scc1 {end}")
    A(f"s_load_dwordx2 s[4:5], s[0:1], {KA_WS}")
    A("v_lshrrev_b32 v1, 6, v0")
    A("v_and_b32 v2, 63, v0")
    A("v_readfirstlane_b32 s24, v1")
    A("v_mul_u32_u24 v3, 7282, v0\nv_lshrrev_b32 v3, 20, v3")
    A("v_mul_u32_u24 v4, 144, v3\nv_sub_u32 v4, v0, v4")
    A("v_lshlrev_b32 v4, 4, v4\nv_add_u32 v4, 1152, v4")
    A("s_lshl_b32 s25, s2, 4")
    A("s_sub_u32 s26, s25, 14")
    A("v_add_u32 v3, s26, v3")
    A("s_lshl_b32 s27, s24, 10")
    A("v_lshlrev_b32 v5, 4, v2")
    A("v_lshrrev_b32 v6, 5, v0")
    A("v_and_b32 v7, 31, v0")
    A("v_mul_u32_u24 v7, 36, v7")
    A("v_add_u32 v8, s25, v6")
    A("v_mul_u32_u24 v9, 3456, v8\nv_add_u32 v9, v9, v7")
    A("v_mul_u32_u24 v10, 2304, v6\nv_add_u32 v10, v10, v7")
    A(f"v_mul_u32_u24 v11, 1168, v6\nv_add_u32 v11, v11, v7\nv_add_u32 v11, {K2_O}, v11")
    A(f"v_and_b32 v12, 15, v2\nv_mul_u32_u24 v13, 1168, v12\nv_and_b32 v14, 48, v2\nv_add_u32 v13, v13, v14\nv_add_u32 v13, {K2_O}, v13")
    A(f"v_mul_u32_u24 v14, 48, v12\nv_add_u32 v14, {K2_ST}, v14")
    A("v_lshl_add_u32 v15, v1, 2, v14")
    A("s_cmp_eq_u32 s2, 0\ns_cselect_b32 s28, 1, 0")
    A("s_waitcnt lgkmcnt(0)")
    srd(A, 8, 4, WS_QKV, QKV_B)
    srd(A, 12, 4, WS_WOF, WOF_B)
    srd(A, 16, 4, WS_XP, ACT)
    srd(A, 20, 4, WS_XN, ACT)
    Q = 16; RES = 26; W = 34; AR = 94; ACC = 152; OB = 140
    assert W + 4 * NPF <= AR and W + 4 * RING <= OB
    for it in range(8):
        A(f"v_max_i32 v{AR}, 0, v3")
        A(f"v_mul_u32_u24 v{AR}, 3456, v{AR}")
        A(f"v_add_u32 v{AR}, v{AR}, v4")
        A(f"s_add_u32 m0, s27, {it*9216}")
        if it < 7: A("v_add_u32 v3, 4, v3")
        A(f"buffer_load_dwordx4 v{AR}, s[8:11], 0 offen lds")
    A(f"buffer_load_dwordx4 v[{Q}:{Q+3}], v9, s[8:11], 0 offen")
    A(f"buffer_load_dwordx4 v[{Q+4}:{Q+7}], v9, s[8:11], 0 offen offset:16")
    tq = A(f"buffer_load_dword v{Q+8}, v9, s[8:11], 0 offen offset:32")
    A("s_mul_i32 s29, s2, 18432\ns_lshl_b32 s30, s24, 11\ns_add_u32 s29, s29, s30")
    A(f"buffer_load_dwordx4 v[{RES}:{RES+3}], v5, s[16:19], s29 offen")
    A(f"buffer_load_dwordx4 v[{RES+4}:{RES+7}], v5, s[16:19], s29 offen offset:1024")
    A("s_mul_i32 s30, s24, 73728\ns_add_u32 s31, s30, 36864")
    def wload(f):
        ks, p, tt = f >> 2, (f >> 1) & 1, f & 1
        r = W + 4 * (f % RING)
        A(f"buffer_load_dwordx4 v[{r}:{r+3}], v5, s[12:15], s{30+p} offen offset:{(ks & 1)*2048 + tt*1024}")
        if (ks & 1) and tt: A(f"s_add_u32 s{30+p}, s{30+p}, 4096")
    for f in range(NPF): wload(f)
    A.wait(vm=tq)
    A("s_barrier")
    skip = A.newlabel("skip")
    A(f"s_cmp_eq_u32 s24, 8\ns_cbranch_scc1 {skip}")
    attn_core(A, 10, 2304, 1152, Q, 8, 28, 40, AR)
    for d in range(0, 8, 2):
        A(f"ds_write2_b32 v11, v{Q+d}, v{Q+d+1} offset0:{d} offset1:{d+1}")
    A(f"ds_write_b32 v11, v{Q+8} offset:32")
    A.label(skip)
    for f in range(NPF, RING): wload(f)
    A("s_waitcnt lgkmcnt(0)")
    A("s_barrier")
    def oread(ks):
        r = OB + 4 * (ks % 3)
        A(f"ds_read_b128 v[{r}:{r+3}], v13 offset:{ks*64}")
    oread(0); oread(1)
    for ks in range(18):
        if ks + 2 < 18: oread(ks + 2)
        for t in range(4):
            f = ks * 4 + t
            r = W + 4 * (f % RING); acc = ACC + 4 * t; ob = OB + 4 * (ks % 3)
            A(f"v_mfma_f32_16x16x32_bf16 v[{acc}:{acc+3}], v[{r}:{r+3}], v[{ob}:{ob+3}], " + ("0" if ks == 0 else f"v[{acc}:{acc+3}]"))
            if f + RING < 72: wload(f + RING)
    X = ACC; T = W
    for j in range(8):
        A(f"v_cvt_pk_bf16_f32 v{X+2*j}, 0, v{X+2*j}\nv_cvt_pk_bf16_f32 v{X+2*j+1}, 0, v{X+2*j+1}")
        unpack_lo(A, T, RES + j); unpack_hi(A, T + 1, RES + j)
        A(f"v_add_f32 v{X+2*j}, v{X+2*j}, v{T}\nv_add_f32 v{X+2*j+1}, v{X+2*j+1}, v{T+1}")
        A(f"v_cvt_pk_bf16_f32 v{RES+j}, v{X+2*j}, v{X+2*j+1}")
        unpack_lo(A, X + 2 * j, RES + j); unpack_hi(A, X + 2 * j + 1, RES + j)
    A(f"buffer_store_dwordx4 v[{RES}:{RES+3}], v5, s[16:19], s29 offen")
    A(f"buffer_store_dwordx4 v[{RES+4}:{RES+7}], v5, s[16:19], s29 offen offset:1024")
    def xreduce(x, area, res):
        wave_reduce_q(A, x, T + 1)
        A("s_mov_b64 exec, 0xffff")
        A(f"ds_write_b32 v15, v{x} offset:{area}")
        A("s_mov_b64 exec, -1")
        A("s_waitcnt lgkmcnt(0)")
        A("s_barrier")
        A(f"ds_read_b128 v[{T+4}:{T+7}], v14 offset:{area}")
        A(f"ds_read_b128 v[{T+8}:{T+11}], v14 offset:{area+16}")
        A(f"ds_read_b32 v{T+12}, v14 offset:{area+32}")
        A(f"v_add_f32 v{res}, v{T+4}, v{T+5}")
        for j in range(6, 13): A(f"v_add_f32 v{res}, v{res}, v{T+j}")
        A(f"v_mul_f32 v{res}, 0x3ae38e39, v{res}")
    A(f"v_add_f32 v{T}, v{X}, v{X+1}")
    for j in range(2, 16): A(f"v_add_f32 v{T}, v{T}, v{X+j}")
    xreduce(T, 0, T + 2)
    A(f"v_sub_f32 v{T+1}, v{X}, v{T+2}\nv_mul_f32 v{T}, v{T+1}, v{T+1}")
    for j in range(1, 16):
        A(f"v_sub_f32 v{T+1}, v{X+j}, v{T+2}\nv_fmac_f32 v{T}, v{T+1}, v{T+1}")
    xreduce(T, 768, T + 3)
    ln_finish(A, X, 16, T + 2, T + 3, T, T + 16)
    A(f"buffer_store_dwordx4 v[{T+16}:{T+19}], v5, s[20:23], s29 offen")
    A(f"buffer_store_dwordx4 v[{T+20}:{T+23}], v5, s[20:23], s29 offen offset:1024")
    A.label(end)
    A("s_endpgm")
    return descriptor(name, 168, 168)
```

```python
import sys
sys.path.insert(0, "dev")
from gen import *
NAME = "interleave_layers__sliding_local_dilated__glu_gated_reglu__prompt"
def build_all(**kw):
    A = Asm()
    hdr = open(f"cdna_kernels/{NAME}.s.ref").read().split("; Override")[0]
    K = dict(k0=("k0_kernel", 328, 576, 1024), k1=("k1_kernel", 216, 256, 73728), k2=("k2_kernel", 128, 576, K2_LDS), k3=("k3_kernel", 256, 256, 163840),
             k4a=("k4a_kernel", 256, 576, 1024), k4b=("k4b_kernel", 256, 576, 1024))
    launches = [K[x] for x in "k0 k1 k2 k3 k4a k1 k2 k3 k4b".split()]
    descs = []
    A.raw('.amdgcn_target "amdgcn-amd-amdhsa--gfx950"\n.text')
    descs.append(gen_rowk(A, "k0_kernel", 0))
    descs.append(gen_rowk(A, "k4a_kernel", 1))
    descs.append(gen_rowk(A, "k4b_kernel", 2))
    descs.append(gen_k1(A, "k1_kernel"))
    descs.append(gen_k2(A, "k2_kernel"))
    n0 = A.nops_inserted; i0 = A.ninstr
    descs.append(gen_k3(A, "k3_kernel", **kw.get('k3', {})))
    print("k3 nops", A.nops_inserted - n0, "instr", A.ninstr - i0)
    txt = hdr + "".join(f"; @launch kernel={k} grid=({g},1,1) block=({b},1,1) lds={l}\n" for k, g, b, l in launches)
    txt += A.text() + '.section .rodata,"a"\n' + "".join(descs)
    return txt
if __name__ == "__main__":
    out = sys.argv[1] if len(sys.argv) > 1 else f"cdna_kernels/{NAME}.s"
    open(out, "w").write(build_all())
```

```python
import sys
sys.path.insert(0, "dev")
from asmlib import *

S_, D_, F_ = 2048, 576, 4608
ACT = S_ * D_ * 2
WS_XP   = 0
WS_XN   = WS_XP + ACT
WS_QKV  = WS_XN + ACT
QKV_B   = S_ * 3456
WS_WOF  = WS_QKV + QKV_B
WOF_B   = 576 * 576 * 2
WS_PART = WS_WOF + WOF_B
PART_B  = 16 * ACT
WS_WQF  = WS_PART + PART_B
WQF_B   = 16 * 126 * 1024
WS_O    = WS_WQF + WQF_B
WS_GR   = WS_O + ACT
GR_B    = 2048 * 48
WS_END  = WS_GR + GR_B
KA_X, KA_WQKV, KA_WO, KA_BX, KA_WG, KA_WU, KA_WD, KA_OUT, KA_DBG, KA_WS = [8 * i for i in range(10)]

WS_PROF = WS_END + (1 << 20)
PROF = [False]
def prof_begin(A):
    if not PROF[0]: return
    A.nstamp = 1
    A("s_memrealtime s[88:89]")
    A("v_lshrrev_b32 v1, 6, v0\nv_readfirstlane_b32 s87, v1")
def stamp(A):
    if not PROF[0]: return
    assert A.nstamp < 6
    A(f"{'s_memtime' if PROF[0] == 2 else 's_memrealtime'} s[{88+2*A.nstamp}:{89+2*A.nstamp}]"); A.nstamp += 1
def prof_end(A):
    if not PROF[0]: return
    A("s_waitcnt vmcnt(0) lgkmcnt(0)")
    A("s_memrealtime s[100:101]")
    A(f"s_load_dwordx4 s[4:7], s[0:1], {KA_DBG}")
    A("s_waitcnt lgkmcnt(0)")
    A("s_lshr_b32 s4, s4, 9\ns_and_b32 s4, s4, 63\ns_lshl_b32 s4, s4, 9\ns_add_u32 s4, s4, s2\ns_lshl_b32 s4, s4, 4\ns_add_u32 s4, s4, s87\ns_lshl_b32 s4, s4, 5")
    srd(A, 8, 6, WS_PROF, 64 * 512 * 16 * 32)
    for i in range(7):
        A(f"v_mov_b32 v{i}, " + (f"s{88+2*i}" if (i < A.nstamp or i == 6) else "0"))
    A("s_getreg_b32 s5, hwreg(HW_REG_XCC_ID)\nv_mov_b32 v7, s5")
    A("v_mov_b32 v8, 0")
    A("s_mov_b64 exec, 1")
    A("buffer_store_dwordx4 v[0:3], v8, s[8:11], s4 offen")
    A("buffer_store_dwordx4 v[4:7], v8, s[8:11], s4 offen offset:16")

def srd(A, d, base_lo, off, nbytes):
    if off:
        A(f"s_add_u32 s{d}, s{base_lo}, {off}")
        A(f"s_addc_u32 s{d+1}, s{base_lo+1}, 0")
    else:
        A(f"s_mov_b32 s{d}, s{base_lo}")
        A(f"s_mov_b32 s{d+1}, s{base_lo+1}")
    A(f"s_mov_b32 s{d+2}, {nbytes}")
    A(f"s_mov_b32 s{d+3}, 0x20000")

def unpack_lo(A, d, src): A(f"v_lshlrev_b32 v{d}, 16, v{src}")
def unpack_hi(A, d, src): A(f"v_and_b32 v{d}, 0xffff0000, v{src}")

def wave_reduce_x8(A, x, t):
    A(f"v_add_f32_dpp v{x}, v{x}, v{x} row_ror:8 row_mask:0xf bank_mask:0xf")
    A(f"v_mov_b32 v{t}, v{x}")
    A(f"v_permlane16_swap_b32 v{x}, v{t}")
    A(f"v_add_f32 v{x}, v{x}, v{t}")
    A(f"v_mov_b32 v{t}, v{x}")
    A(f"v_permlane32_swap_b32 v{x}, v{t}")
    A(f"v_add_f32 v{x}, v{x}, v{t}")

def round_bf16(A, x, t=None):
    A(f"v_cvt_pk_bf16_f32 v{x}, 0, v{x}")

def ln_finish(A, X, nel, mean, var, T, outbase):
    round_bf16(A, mean)
    round_bf16(A, var)
    A(f"v_add_f32 v{var}, 0x3727c5ac, v{var}")
    round_bf16(A, var)
    A(f"v_sqrt_f32 v{var}, v{var}")
    round_bf16(A, var)
    A(f"v_rcp_f32 v{var}, v{var}")
    for j in range(0, nel, 2):
        A(f"v_sub_f32 v{X+j}, v{X+j}, v{mean}")
        A(f"v_sub_f32 v{X+j+1}, v{X+j+1}, v{mean}")
        A(f"v_cvt_pk_bf16_f32 v{T}, v{X+j}, v{X+j+1}")
        unpack_lo(A, X + j, T); unpack_hi(A, X + j + 1, T)
        A(f"v_mul_f32 v{X+j}, v{X+j}, v{var}")
        A(f"v_mul_f32 v{X+j+1}, v{X+j+1}, v{var}")
        A(f"v_cvt_pk_bf16_f32 v{outbase+j//2}, v{X+j}, v{X+j+1}")

XF_R = 48
def xf_wo_job(A, sf, dst):
    A(f"s_and_b32 s52, s{sf}, 1")
    A(f"s_lshr_b32 s53, s{sf}, 1")
    A("s_mul_i32 s54, s53, 3641\ns_lshr_b32 s54, s54, 16")
    A("s_mul_i32 s55, s54, 18\ns_sub_u32 s55, s53, s55")
    A("s_mul_i32 s55, s55, 36864\ns_lshl_b32 s54, s54, 6\ns_add_u32 s55, s55, s54\ns_lshl_b32 s52, s52, 5\ns_add_u32 s55, s55, s52")
    for j in range(8):
        A(f"buffer_load_ushort v{dst+j}, v{44 if j < 4 else 45}, s[60:63], s55 offen offset:{(j&3)*1152}")
    A(f"s_lshl_b32 s{sf}, s{sf}, 10\ns_add_u32 s{sf}, s{sf}, {WS_WOF}")
def xf_issue(A):
    srd(A, 56, 44, 0, 576 * 3456)
    srd(A, 60, 46, 0, WOF_B)
    srd(A, 64, 4, 0, WS_END)
    A("v_readfirstlane_b32 s48, v1")
    A("s_mul_i32 s49, s2, 9\ns_add_u32 s48, s48, s49")
    A("v_lshrrev_b32 v46, 4, v2\nv_and_b32 v47, 15, v2")
    A("v_mul_u32_u24 v44, 9216, v46\nv_lshl_add_u32 v44, v47, 1, v44\nv_add_u32 v45, 4608, v44")
    lwo = A.newlabel("xfwo"); lb = A.newlabel("xfb"); ld = A.newlabel("xfd")
    A(f"s_cmp_ge_u32 s48, 2016\ns_cbranch_scc1 {lwo}")
    A("s_mul_i32 s50, s48, 33289\ns_lshr_b32 s50, s50, 22")
    A("s_mul_i32 s51, s50, 126\ns_sub_u32 s51, s48, s51")
    A("s_mul_i32 s52, s51, 9363\ns_lshr_b32 s52, s52, 16")
    A("s_mul_i32 s53, s52, 7\ns_sub_u32 s53, s51, s53")
    A("s_lshl_b32 s53, s53, 4\nv_add_u32 v47, s53, v47")
    A("v_mul_u32_u24 v46, 13824, v46")
    A("v_lshl_add_u32 v46, v47, 1, v46")
    A("v_cmp_lt_u32 vcc, 35, v47\nv_add_u32 v43, 1080, v46\nv_cndmask_b32 v46, v46, v43, vcc")
    A("v_cmp_lt_u32 vcc, 71, v47\nv_add_u32 v43, 1080, v46\nv_cndmask_b32 v46, v46, v43, vcc")
    A(f"s_mul_i32 s52, s52, {32*3456}\ns_mul_i32 s50, s50, 72\ns_add_u32 s52, s52, s50")
    for j in range(8):
        A(f"buffer_load_ushort v{XF_R+j}, v46, s[56:59], s52 offen offset:{(j&1)*3456}")
        if j & 1 and j < 7: A(f"s_add_u32 s52, s52, {(2 if j != 3 else 14)*3456}")
    A(f"s_lshl_b32 s50, s48, 10\ns_add_u32 s50, s50, {WS_WQF}")
    A(f"s_branch {lb}")
    A.label(lwo)
    A.vm_issued -= 8
    for j in range(16): A.pend.pop(('v', XF_R + j), None)
    A("s_sub_u32 s50, s48, 2016")
    xf_wo_job(A, 50, XF_R)
    A.label(lb)
    A(f"s_cmp_ge_u32 s48, 360\ns_cbranch_scc1 {ld}")
    A("s_add_u32 s51, s48, 288")
    xf_wo_job(A, 51, XF_R + 8)
    A.label(ld)
    A.vm_issued -= 8
    for j in range(16): A.pend.pop(('v', XF_R + j), None)
def xf_store(A):
    A("s_waitcnt vmcnt(0)")
    A("v_lshlrev_b32 v44, 4, v2")
    for j in range(4):
        A(f"v_lshl_or_b32 v{XF_R+j}, v{XF_R+1+2*j}, 16, v{XF_R+2*j}")
    A(f"buffer_store_dwordx4 v[{XF_R}:{XF_R+3}], v44, s[64:67], s50 offen")
    ld = A.newlabel("xfd")
    A(f"s_cmp_ge_u32 s48, 360\ns_cbranch_scc1 {ld}")
    for j in range(4):
        A(f"v_lshl_or_b32 v{XF_R+8+j}, v{XF_R+9+2*j}, 16, v{XF_R+8+2*j}")
    A(f"buffer_store_dwordx4 v[{XF_R+8}:{XF_R+11}], v44, s[64:67], s51 offen")
    A.label(ld)

def gen_rowk(A, name, mode):
    kernel_begin(A, name)
    end = A.newlabel("end")
    nwg = 256
    A(f"s_cmp_ge_u32 s2, {nwg}\ns_cbranch_scc1 {end}")
    prof_begin(A)
    fin = A.newlabel("fin")
    A(f"s_load_dwordx2 s[4:5], s[0:1], {KA_WS}")
    A(f"s_load_dwordx2 s[6:7], s[0:1], {KA_X if mode != 2 else KA_OUT}")
    if mode == 0:
        A(f"s_load_dwordx4 s[44:47], s[0:1], {KA_WQKV}")
    A("v_lshrrev_b32 v1, 6, v0")
    A("v_and_b32 v2, 63, v0")
    A("s_waitcnt lgkmcnt(0)")
    srd(A, 8, 4, WS_XP, ACT)
    srd(A, 12, 4, WS_XN, ACT)
    srd(A, 16, 4, WS_PART, PART_B)
    srd(A, 20, 6, 0, ACT)
    A("v_lshrrev_b32 v3, 5, v0")
    A("v_bfe_u32 v4, v0, 3, 2")
    A("v_and_b32 v5, 7, v0")
    A("s_lshr_b32 s24, s2, 1")
    A("s_and_b32 s25, s2, 1")
    A("v_lshlrev_b32 v6, 10, v3")
    A("v_lshl_add_u32 v6, v4, 8, v6")
    A("v_lshl_add_u32 v6, v5, 4, v6")
    A("s_mul_i32 s26, s24, 18432")
    A("s_lshl_b32 s27, s25, 7")
    A("s_add_u32 s26, s26, s27")
    A("v_add_u32 v6, s26, v6")
    A("s_lshl_b32 s27, s2, 3")
    A("v_add_u32 v7, s27, v5")
    A("v_mul_u32_u24 v7, 1152, v7")
    A("v_lshl_add_u32 v7, v3, 6, v7")
    A("v_lshl_add_u32 v7, v4, 3, v7")
    X = 16
    R = 8
    PB = 32
    if mode == 0:
        A(f"buffer_load_dwordx2 v[{R}:{R+1}], v7, s[20:23], 0 offen")
        A(f"buffer_load_dwordx2 v[{R+2}:{R+3}], v7, s[20:23], 0 offen offset:32")
        xf_issue(A)
        for j in range(4):
            unpack_lo(A, X + 2 * j, R + j); unpack_hi(A, X + 2 * j + 1, R + j)
        A(f"buffer_store_dwordx4 v[{R}:{R+3}], v6, s[8:11], 0 offen")
    else:
        A("s_mov_b32 s30, 0")
        for f in range(16):
            A(f"buffer_load_dwordx4 v[{PB+4*f}:{PB+4*f+3}], v6, s[16:19], s30 offen")
            if f < 15: A(f"s_add_u32 s30, s30, {ACT}")
        A(f"buffer_load_dwordx4 v[{R}:{R+3}], v6, s[8:11], 0 offen")
        for j in range(4):
            unpack_lo(A, X + 2 * j, PB + j); unpack_hi(A, X + 2 * j + 1, PB + j)
        for f in range(1, 16):
            for j in range(4):
                unpack_lo(A, 24, PB + 4 * f + j); unpack_hi(A, 25, PB + 4 * f + j)
                A(f"v_add_f32 v{X+2*j}, v{X+2*j}, v24")
                A(f"v_add_f32 v{X+2*j+1}, v{X+2*j+1}, v25")
        for j in range(4):
            A(f"v_cvt_pk_bf16_f32 v24, v{X+2*j}, v{X+2*j+1}")
            unpack_lo(A, X + 2 * j, 24); unpack_hi(A, X + 2 * j + 1, 24)
            unpack_lo(A, 24, R + j); unpack_hi(A, 25, R + j)
            A(f"v_add_f32 v{X+2*j}, v{X+2*j}, v24")
            A(f"v_add_f32 v{X+2*j+1}, v{X+2*j+1}, v25")
            A(f"v_cvt_pk_bf16_f32 v{R+j}, v{X+2*j}, v{X+2*j+1}")
        if mode == 2:
            A(f"buffer_store_dwordx2 v[{R}:{R+1}], v7, s[20:23], 0 offen")
            A(f"buffer_store_dwordx2 v[{R+2}:{R+3}], v7, s[20:23], 0 offen offset:32")
            A(f"s_branch {fin}")
        else:
            A(f"buffer_store_dwordx4 v[{R}:{R+3}], v6, s[8:11], 0 offen")
            for j in range(4):
                unpack_lo(A, X + 2 * j, R + j); unpack_hi(A, X + 2 * j + 1, R + j)
    if mode != 2:
        A("v_mul_u32_u24 v26, 48, v5")
        A("v_lshl_add_u32 v27, v1, 2, v26")
        def xreduce(x, area, res):
            wave_reduce_x8(A, x, 25)
            A("s_mov_b64 exec, 0xff")
            A(f"ds_write_b32 v27, v{x} offset:{area}")
            A("s_mov_b64 exec, -1")
            A("s_waitcnt lgkmcnt(0)")
            A("s_barrier")
            A(f"ds_read_b128 v[32:35], v26 offset:{area}")
            A(f"ds_read_b128 v[36:39], v26 offset:{area+16}")
            A(f"ds_read_b32 v40, v26 offset:{area+32}")
            A(f"v_add_f32 v{res}, v32, v33")
            for j in range(34, 41): A(f"v_add_f32 v{res}, v{res}, v{j}")
            A(f"v_mul_f32 v{res}, 0x3ae38e39, v{res}")
        A(f"v_add_f32 v24, v{X}, v{X+1}")
        for j in range(2, 8): A(f"v_add_f32 v24, v24, v{X+j}")
        xreduce(24, 0, 28)
        A(f"v_sub_f32 v25, v{X}, v28")
        A("v_mul_f32 v24, v25, v25")
        for j in range(1, 8):
            A(f"v_sub_f32 v25, v{X+j}, v28")
            A("v_fmac_f32 v24, v25, v25")
        xreduce(24, 512, 29)
        ln_finish(A, X, 8, 28, 29, 24, 12)
        A("buffer_store_dwordx4 v[12:15], v6, s[12:15], 0 offen")
    if mode == 0:
        xf_store(A)
    A.label(fin)
    prof_end(A)
    A.label(end)
    A("s_endpgm")
    return descriptor(name, 96, 96)

XV = 224
def xreg(mt, ks):
    idx = (ks * 4 + mt) * 4
    return a(idx, 4) if idx < 256 else v(XV + idx - 256, 4)

def tr_addr_regs(A, dst, tiles_expr, lane, T):
    t0, t1, t2 = T, T + 1, T + 2
    A(f"v_lshrrev_b32 v{t0}, 2, v{lane}")
    A(f"v_and_b32 v{t1}, 6, v{t0}")
    A(f"v_lshlrev_b32 v{t1}, 4, v{t1}")
    A(f"v_lshlrev_b32 v{t0}, 7, v{t0}")
    A(f"v_and_b32 v{t2}, 3, v{lane}")
    A(f"v_lshl_add_u32 v{t0}, v{t2}, 3, v{t0}")
    for d, te in zip(dst, tiles_expr):
        if isinstance(te, int):
            A(f"v_xor_b32 v{d}, {te*32}, v{t1}")
        else:
            A(f"v_xor_b32 v{d}, s{te[1]}, v{t1}")
        A(f"v_add_u32 v{d}, v{d}, v{t0}")

def dma_voff(A, dst, lane, pitch, T):
    A(f"v_lshrrev_b32 v{T}, 3, v{lane}")
    A(f"v_and_b32 v{T+1}, 6, v{T}")
    A(f"v_xor_b32 v{T+1}, v{T+1}, v{lane}")
    A(f"v_and_b32 v{T+1}, 7, v{T+1}")
    A(f"v_mul_u32_u24 v{dst}, {pitch}, v{T}")
    A(f"v_lshl_add_u32 v{dst}, v{T+1}, 4, v{dst}")

def gen_k1(A, name):
    kernel_begin(A, name)
    end = A.newlabel("end")
    A(f"s_cmp_ge_u32 s2, 216\ns_cbranch_scc1 {end}")
    prof_begin(A)
    fin = A.newlabel("fin")
    A(f"s_load_dwordx2 s[4:5], s[0:1], {KA_WS}")
    A(f"s_load_dwordx2 s[6:7], s[0:1], {KA_WQKV}")
    A("v_lshrrev_b32 v1, 6, v0")
    A("v_and_b32 v2, 63, v0")
    A("v_readfirstlane_b32 s24, v1")
    A("s_and_b32 s25, s2, 7")
    A("s_lshr_b32 s26, s2, 3")
    dma_voff(A, 3, 2, 3456, 10)
    A("v_lshlrev_b32 v4, 4, v2")
    tr_addr_regs(A, [5, 6, 7, 8], [0, 1, 2, 3], 2, 10)
    A("v_and_b32 v10, 15, v2\nv_mul_u32_u24 v9, 3456, v10\nv_lshrrev_b32 v10, 4, v2\nv_lshl_add_u32 v9, v10, 3, v9")
    A("s_waitcnt lgkmcnt(0)")
    srd(A, 8, 4, WS_XN, ACT)
    srd(A, 12, 6, 0, 576 * 3456)
    srd(A, 16, 4, WS_QKV, QKV_B)
    A("s_lshl_b32 s27, s25, 4\ns_lshl_b32 s28, s24, 2\ns_add_u32 s27, s27, s28")
    for m in range(4):
        A(f"s_add_u32 s28, s27, {m}")
        A(f"s_mul_i32 s{32+m}, s28, 18432")
    A("s_mul_i32 s28, s24, 27648\ns_lshl_b32 s29, s26, 7\ns_add_u32 s28, s28, s29")
    A("s_lshl_b32 s30, s24, 10")
    A("s_mul_i32 s31, s27, 55296\ns_add_u32 s31, s31, s29")
    dtok = {}
    def issue(ks):
        A(f"s_add_u32 m0, s30, {ks*4096}")
        dtok[ks] = A("buffer_load_dwordx4 v3, s[12:15], s28 offen lds")
        if ks < 17: A(f"s_add_u32 s28, s28, {32*3456}")
        for m in range(4):
            A(f"buffer_load_dwordx4 {xreg(m, ks)}, v4, s[8:11], s{32+m} offen offset:{(ks%4)*1024}")
            if ks % 4 == 3: A(f"s_add_u32 s{32+m}, s{32+m}, 4096")
    for ks in range(12): issue(ks)
    ACC = 16
    FR = 80
    nfr = 0
    def read_frag(ks, t):
        nonlocal nfr
        sl = FR + 4 * (nfr % 8); nfr += 1
        off = ks * 4096
        if off >= 32768 and ks >= 9: off -= 36864
        A(f"ds_read_b64_tr_b16 v[{sl}:{sl+1}], v{5+t} offset:{off}")
        A(f"ds_read_b64_tr_b16 v[{sl+2}:{sl+3}], v{5+t} offset:{off+2048}")
        return sl
    seq = [(ks, t) for ks in range(18) for t in range(4)]
    slots = {}
    def pre(i):
        if i >= len(seq): return
        ks, t = seq[i]
        if t == 0 and ks % 3 == 0:
            A.wait(vm=dtok[ks + 2])
            A("s_barrier")
            if ks == 9:
                for j in range(4): A(f"v_add_u32 v{5+j}, 36864, v{5+j}")
        slots[i] = read_frag(ks, t)
    D = 4
    for i in range(D): pre(i)
    for i, (ks, t) in enumerate(seq):
        if t == 0 and ks + 12 < 18: issue(ks + 12)
        for m in range(4):
            acc = ACC + (t * 4 + m) * 4
            c = "0" if ks == 0 else v(acc, 4)
            A(f"v_mfma_f32_16x16x32_bf16 {v(acc,4)}, {v(slots[i],4)}, {xreg(m, ks)}, {c}")
            if m == 0: pre(i + D)
    for m in range(4):
        for t in range(4):
            acc = ACC + (t * 4 + m) * 4
            A(f"v_cvt_pk_bf16_f32 v{acc}, v{acc}, v{acc+1}")
            A(f"v_cvt_pk_bf16_f32 v{acc+1}, v{acc+2}, v{acc+3}")
            A(f"buffer_store_dwordx2 v[{acc}:{acc+1}], v9, s[16:19], s31 offen offset:{32*t}")
        if m < 3: A("s_add_u32 s31, s31, 55296")
    A.label(fin)
    prof_end(A)
    A.label(end)
    A("s_endpgm")
    return descriptor(name, 512, 256)

def gen_k3(A, name, D=4, BI=12, store_mods="", NSLOT=40, l2pf=0):
    kernel_begin(A, name)
    end = A.newlabel("end")
    A(f"s_cmp_ge_u32 s2, 256\ns_cbranch_scc1 {end}")
    prof_begin(A)
    fin = A.newlabel("fin")
    A(f"s_load_dwordx2 s[4:5], s[0:1], {KA_WS}")
    A(f"s_load_dwordx4 s[40:43], s[0:1], {KA_WG}")
    A(f"s_load_dwordx2 s[44:45], s[0:1], {KA_WD}")
    A("v_lshrrev_b32 v1, 6, v0")
    A("v_and_b32 v2, 63, v0")
    A("v_readfirstlane_b32 s24, v1")
    A("s_and_b32 s25, s2, 7\ns_lshl_b32 s25, s25, 1\ns_lshr_b32 s26, s2, 3\ns_and_b32 s27, s26, 1\ns_add_u32 s25, s25, s27")
    A("s_lshr_b32 s26, s26, 1")
    A("s_and_b32 s28, s24, 1")
    A("s_lshr_b32 s29, s24, 1")
    V_GU, V_D, V_L16, V_HG = 3, 4, 5, 6
    V_W = 8
    V_H = 14
    V_XR = 17
    V_HW = 20
    TMP = 24
    P = 32
    E = 96
    T = 128
    T1 = T
    FR = 160
    T2 = 192
    NFR = 8
    dma_voff(A, V_GU, 2, 9216, TMP)
    dma_voff(A, V_D, 2, 1152, TMP)
    A(f"v_lshlrev_b32 v{V_L16}, 4, v2")
    A(f"v_lshrrev_b32 v{TMP}, 2, v2")
    A(f"v_lshrrev_b32 v{TMP+1}, 3, v2\nv_and_b32 v{TMP+1}, 2, v{TMP+1}")
    A(f"v_xor_b32 v{TMP+1}, v{TMP+1}, v2\nv_and_b32 v{TMP+1}, 3, v{TMP+1}")
    A(f"v_mul_u32_u24 v{V_HG}, 9216, v{TMP}\nv_lshl_add_u32 v{V_HG}, v{TMP+1}, 4, v{V_HG}")
    A("s_lshl_b32 s30, s29, 6\ns_add_u32 s31, s30, 32")
    tr_addr_regs(A, [V_W, V_W + 1], [('s', 30), ('s', 31)], 2, TMP)
    A(f"v_lshrrev_b32 v{TMP}, 2, v2\nv_lshlrev_b32 v{TMP}, 6, v{TMP}")
    A(f"v_bfe_u32 v{TMP+1}, v2, 4, 1\nv_xor_b32 v{TMP+1}, s29, v{TMP+1}\nv_lshl_add_u32 v{TMP}, v{TMP+1}, 5, v{TMP}")
    A(f"v_and_b32 v{TMP+1}, 3, v2\nv_lshl_add_u32 v{V_H}, v{TMP+1}, 3, v{TMP}")
    A(f"s_lshl_b32 s30, s28, 12\nv_add_u32 v{V_XR}, s30, v{V_L16}")
    for w in (1, 2):
        A(f"v_add_u32 v{V_W+2*w}, {65536*w}, v{V_W}\nv_add_u32 v{V_W+2*w+1}, {65536*w}, v{V_W+1}")
        A(f"v_add_u32 v{V_H+w}, {65536*w}, v{V_H}\nv_add_u32 v{V_XR+w}, {65536*w}, v{V_XR}")
    A(f"s_lshl_b32 s30, s24, 12\ns_add_u32 s30, s30, 65536\nv_add_u32 v{V_HW}, s30, v{V_L16}")
    A(f"s_lshl_b32 s30, s29, 3\nv_add_u32 v{V_HW+1}, s30, v{V_XR+1}")
    A("s_mov_b32 s33, 0xffff0000")
    A("s_lshl_b32 s32, s24, 10")
    A("s_waitcnt lgkmcnt(0)")
    srd(A, 8, 4, WS_XN, ACT)
    srd(A, 12, 40, 0, 576 * 9216)
    srd(A, 16, 42, 0, 576 * 9216)
    srd(A, 20, 44, 0, 4608 * 1152)
    srd(A, 48, 4, WS_PART, PART_B)
    A("s_cmp_eq_u32 s29, 0\ns_cselect_b32 s52, s40, s42\ns_cselect_b32 s53, s41, s43")
    A(f"s_mov_b32 s54, {576*9216}\ns_mov_b32 s55, 0x20000")
    A("s_mul_i32 s35, s25, 576\ns_lshl_b32 s30, s27, 6")
    A(f"s_mul_i32 s31, s24, {8*9216}\ns_add_u32 s30, s30, s31\nv_add_u32 v{V_GU}, s30, v{V_GU}")
    A("s_xor_b32 s30, s27, 1\ns_lshl_b32 s30, s30, 9")
    A(f"s_mul_i32 s31, s28, {16*9216}\ns_add_u32 s30, s30, s31\nv_add_u32 v{V_HG}, s30, v{V_HG}")
    A("s_mul_i32 s30, s25, 288\ns_lshl_b32 s31, s24, 3\ns_add_u32 s30, s30, s31")
    A("s_lshl_b32 s31, s27, 5\ns_add_u32 s37, s30, s31\ns_mul_i32 s37, s37, 1152")
    A("s_xor_b32 s31, s27, 1\ns_lshl_b32 s31, s31, 8\ns_add_u32 s38, s30, s31\ns_mul_i32 s38, s38, 1152")
    A("s_lshl_b32 s30, s26, 3\ns_add_u32 s31, s30, s24\ns_mul_i32 s39, s31, 18432")
    A(f"s_lshl_b32 s31, s28, 2\ns_add_u32 s31, s30, s31\ns_mul_i32 s31, s31, 18432\ns_mul_i32 s46, s25, {ACT}\ns_add_u32 s46, s46, s31")
    A("s_lshl_b32 s31, s29, 10\ns_add_u32 s46, s46, s31")

    SK = 60; SD = 78
    A(f"s_mov_b32 s{SK}, s35")
    for ks in range(1, 18): A(f"s_add_u32 s{SK+ks}, s{SK+ks-1}, {32*9216}")
    A(f"s_mov_b32 s{SD}, s37")
    for kk in range(1, 8): A(f"s_add_u32 s{SD+kk}, s{SD+kk-1}, {32*1152}")
    A(f"s_mov_b32 s{SD+8}, s38")
    items = []
    for g in range(4):
        for ks in range(18):
            for it in range(4):
                items.append(dict(unit=('G' if it < 2 else 'U', g, ks), kind='W', tile=it & 1,
                                  acc=[P + (it * 4 + m) * 4 for m in range(4)], b=[xreg(m, ks) for m in range(4)],
                                  first=ks == 0, last=ks == 17, grp=('g', g), it=it))
    hg0 = len(items)
    for ks in range(18):
        for it in range(2):
            items.append(dict(unit=('HG', ks), kind='H', tile=it, acc=[P + (it * 4 + m) * 4 for m in range(4)],
                              b=[xreg(m, ks) for m in range(4)], first=ks == 0, last=ks == 17, grp=('h',), it=it))
    p20 = len(items)
    order = [(0, kk) for kk in range(6)] + [(1, kk) for kk in range(6)] + [(0, 6), (0, 7), (1, 6), (1, 7)] + [(2, kk) for kk in range(6)] + \
            [(0, 8), (1, 8), (2, 6), (2, 7), (2, 8)] + [(ng, kk) for ng in range(3, 9) for kk in range(9)]
    sets = [P + 32, E, P]
    for (ng, kk) in order:
        for tt in range(2):
            items.append(dict(unit=('D', ng, kk), kind='W', tile=tt, acc=[sets[ng % 3] + (m * 2 + tt) * 4 for m in range(4)],
                              b=[xreg(m, kk) for m in range(4)], first=kk == 0, last=kk == 8, grp=('n', ng), it=tt))
    N = len(items)
    bpos = [0, 4, 8, 12, 18] + list(range(24, N, BI))
    def interval_of_read(i):
        k = 0
        for j, p in enumerate(bpos):
            if p <= i: k = j
        return k
    def rel_after(i):
        for k, p in enumerate(bpos):
            if p - D >= i: return k
        return 10 ** 6
    units = {}
    ulist = []
    def touch(u, ri, ci, pair=False):
        if u not in units:
            units[u] = dict(fr=interval_of_read(ri), rel=0, pair=pair, name=u); ulist.append(u)
        units[u]['rel'] = max(units[u]['rel'], rel_after(ci))
    xread_at = {}
    for i, itx in enumerate(items):
        if i < 72 - 4:
            ks = i // 4 + 1; m = i % 4
            if i == 0: touch(('X', 0), 0, 1, True)
            touch(itx['unit'], i, i)
            touch(('X', ks), i, ks * 4 + 1, True)
            xread_at[i] = (ks, m)
        else:
            touch(itx['unit'], i, i)
    uidx = {u: i for i, u in enumerate(ulist)}
    ulist = sorted(ulist, key=lambda u: (units[u]['fr'], uidx[u]))
    HBASE = NSLOT - 18
    assert HBASE * 4096 >= 65536 and (NSLOT * 4096 - 65536) <= 2 * 65536
    slot_deadline = {}
    for g in range(5):
        endi = (g + 1) * 72 if g < 4 else p20
        k = interval_of_read(endi + D)
        for sidx in range(4 if g < 4 else 2):
            slot_deadline[HBASE + 4 * g + sidx] = k
    hread_q = [(kk, m) for kk in range(9) for m in range(4)]
    hread_done = set()
    h_release = rel_after(p20 + 2 * order.index((0, 8)) + 1)
    free_at = {sl: 0 for sl in range(NSLOT)}
    issue_in = {}
    nxt = 0
    for k in range(-1, len(bpos)):
        lst = []
        while nxt < len(ulist):
            u = units[ulist[nxt]]
            kk_ = max(k, 0)
            def ok(sl):
                if free_at[sl] > kk_: return False
                if sl in slot_deadline and kk_ < h_release and u['rel'] > slot_deadline[sl]: return False
                return True
            if u['pair']:
                c = [sl for sl in range(0, NSLOT, 2) if ok(sl) and ok(sl + 1)]
            else:
                c = [sl for sl in range(NSLOT) if ok(sl)]
            if not c: break
            c.sort(key=lambda sl: (0 if (sl in slot_deadline and kk_ < h_release) else 1, free_at[sl], sl))
            sl = c[0]
            u['slot'] = sl
            free_at[sl] = u['rel']
            if u['pair']: free_at[sl + 1] = u['rel']
            assert k < u['fr'], (u, k)
            lst.append(u); nxt += 1
        issue_in[k] = lst
    assert nxt == len(ulist)
    lead = {}
    for k, lst in issue_in.items():
        for u in lst: lead.setdefault(u['fr'] - k, 0); lead[u['fr'] - k] += 1
    A.raw(f"; lead histogram (intervals): {sorted(lead.items())}")

    def dma_parts(u):
        n = u['name']; sl = u['slot']
        def one(voff, srdn, sreg, imm, lds, pre=()):
            if lds < imm:
                pre = [f"s_add_u32 s47, s{sreg}, {imm}"]; sreg = 47; imm = 0
            return (list(pre) + [f"s_add_u32 m0, s32, {(lds - imm) & 0xffffffff}"],
                    f"buffer_load_dwordx4 v{voff}, s[{srdn}:{srdn+3}], s{sreg} offen offset:{imm} lds", u)
        if n[0] == 'X':
            return [one(V_L16, 8, 47, 0, sl * 4096, [f"s_add_u32 s47, s39, {n[1]*1024}"]),
                    one(V_L16, 8, 47, 0, sl * 4096 + 4096, [f"s_add_u32 s47, s39, {n[1]*1024 + 4*18432}"])]
        elif n[0] in 'GU':
            return [one(V_GU, 12 if n[0] == 'G' else 16, SK + n[2], n[1] * 128, sl * 4096)]
        elif n[0] == 'HG':
            return [one(V_HG, 52, SK + n[1], 0, sl * 4096)]
        else:
            return [one(V_D, 20, SD + n[2], n[1] * 128, sl * 4096)]
    def dma_pre(p):
        for x in p[0]: A(x)
    def dma_ld(p):
        p[2]['tok'] = A(p[1])
    def dma(p):
        dma_pre(p); dma_ld(p)
    def lds_rd(base, addr, stride=1):
        w = addr >> 16
        return base + w * stride, addr & 0xffff
    cur_int = [-1]
    dma_q = []
    hw_tok = {}; hw_int = {}; hw_cnt = {}
    slots = {}
    def pre(i):
        if i >= N: return
        if i in bpos:
            k = bpos.index(i)
            assert not dma_q, ("dma queue not drained", i, len(dma_q))
            toks = [u['tok'] for u in units.values() if u['fr'] == k]
            if toks: A.wait(vm=max(toks))
            if hw_tok: A.wait(lg=max(hw_tok.values()))
            A("s_barrier")
            cur_int[0] = k
            for u in issue_in[k]: dma_q.extend(dma_parts(u))
        itx = items[i]; u = units[itx['unit']]
        sl = FR + 4 * (i % NFR); slots[i] = sl
        if itx['kind'] == 'W':
            r, off = lds_rd(V_W + itx['tile'], u['slot'] * 4096, 2)
            A(f"ds_read_b64_tr_b16 v[{sl}:{sl+1}], v{r} offset:{off}")
            A(f"ds_read_b64_tr_b16 v[{sl+2}:{sl+3}], v{r} offset:{off+2048}")
        else:
            r, off = lds_rd(V_H, u['slot'] * 4096 + itx['tile'] * 2048)
            A(f"ds_read_b64_tr_b16 v[{sl}:{sl+1}], v{r} offset:{off}")
            A(f"ds_read_b64_tr_b16 v[{sl+2}:{sl+3}], v{r} offset:{off+1024}")
    def extra_reads(i):
        if i in xread_at:
            ks, m = xread_at[i]
            r, off = lds_rd(V_XR, units[('X', ks)]['slot'] * 4096 + m * 1024)
            A(f"ds_read_b128 {xreg(m, ks)}, v{r} offset:{off}")
    def h_read(i):
        if not hread_q: return False
        kk, m = hread_q[0]
        g = kk >> 1
        if i <= hg0 + 2 * kk + 1: return False
        if hw_cnt.get(g, 0) < 4 or hw_int[g] >= cur_int[0]: return False
        hread_q.pop(0); hread_done.add((kk, m))
        addr = (HBASE + 4 * g) * 4096 + ((kk & 1) * 8192 if kk < 8 else 0) + m * 1024
        r, off = lds_rd(V_XR, addr)
        A(f"ds_read_b128 {xreg(m, kk)}, v{r} offset:{off}")
        return True
    defer = []
    timed = {}
    def sched_epilogue(i, itx):
        gk = itx['grp']
        if gk[0] == 'g' and gk[1] > 0: assert hw_cnt.get(gk[1] - 1, 0) == 4
        for m in range(4):
            acc = itx['acc'][m]
            at = i * 4 + m + 7
            if gk[0] == 'g':
                it = itx['it']
                d = T + (16 if it >= 2 else 0) + m * 4 + (it & 1) * 2
            elif gk[0] == 'h':
                d = T2 + (16 if itx['it'] else 0) + m * 4
            else:
                d = acc - itx['it'] * 4 + itx['it'] * 2
            timed.setdefault(at, []).append(f"v_cvt_pk_bf16_f32 v{d}, v{acc}, v{acc+1}")
            timed.setdefault(at, []).append(f"v_cvt_pk_bf16_f32 v{d+1}, v{acc+2}, v{acc+3}")
        lastit = {'g': 3, 'h': 1, 'n': 1}[gk[0]]
        if itx['it'] == lastit:
            timed.setdefault(i * 4 + 3 + 8, []).append(('defer', gk))
    def push_defer(gk):
        if gk[0] in 'gh':
            g = gk[1] if gk[0] == 'g' else 4
            nd = 4 if g < 4 else 2
            T = T1 if g < 4 else T2
            for m in range(4):
                for j in range(nd):
                    gr = T + m * 4 + j; ur = gr + 16
                    t0 = TMP + (j & 1) * 4
                    defer.extend([f"v_pk_max_i16 v{gr}, v{gr}, 0",
                                  f"v_lshlrev_b32 v{t0+1}, 16, v{ur}", f"v_and_b32 v{t0+3}, s33, v{ur}",
                                  f"v_lshlrev_b32 v{t0}, 16, v{gr}", f"v_and_b32 v{t0+2}, s33, v{gr}",
                                  f"v_mul_f32 v{t0}, v{t0}, v{t0+1}", f"v_mul_f32 v{t0+2}, v{t0+2}, v{t0+3}",
                                  f"v_cvt_pk_bf16_f32 v{gr}, v{t0}, v{t0+2}"])
                off = (HBASE + 4 * g) * 4096 + m * 1024 - 65536
                if g < 4: defer.append(('hw', g, off, f"ds_write_b128 v{{r}}, v[{T+m*4}:{T+m*4+3}] offset:{{o}}", V_HW))
                else: defer.append(('hw', g, off, f"ds_write_b64 v{{r}}, v[{T+m*4}:{T+m*4+1}] offset:{{o}}", V_HW + 1))
        else:
            ng = gk[1]
            for m in range(4):
                b = sets[ng % 3] + m * 8
                defer.append(f"s_add_u32 s56, s46, {m*18432 + ng*2048}")
                defer.append(f"buffer_store_dwordx4 v[{b}:{b+3}], v{V_L16}, s[48:51], s56 offen {store_mods}")
            defer.append(('done', ng))
    hw_hi = [False]
    stored = set()
    def emit_defer(x):
        if isinstance(x, tuple) and x[0] == 'done':
            stored.add(x[1])
        elif isinstance(x, tuple):
            _, g, off, fmt, r = x
            if off >= 65536 and not hw_hi[0]:
                A(f"v_add_u32 v{V_HW}, 65536, v{V_HW}\nv_add_u32 v{V_HW+1}, 65536, v{V_HW+1}"); hw_hi[0] = True
            if hw_hi[0]: off -= 65536
            assert 0 <= off < 65536
            assert cur_int[0] >= slot_deadline[HBASE + 4 * g]
            hw_tok[g] = A(fmt.format(r=r, o=off)); hw_int[g] = cur_int[0]; hw_cnt[g] = hw_cnt.get(g, 0) + 1
        else:
            A(x)
    for u in issue_in[-1]:
        for p in dma_parts(u): dma(p)
    if l2pf:
        A(f"v_mul_u32_u24 v{TMP}, 52429, v0\nv_lshrrev_b32 v{TMP}, 18, v{TMP}")
        A(f"v_mul_u32_u24 v{TMP+1}, 5, v{TMP}\nv_sub_u32 v{TMP+1}, v0, v{TMP+1}")
        A(f"v_min_u32 v{TMP}, 35, v{TMP}")
        A(f"v_mul_u32_u24 v{TMP}, 9216, v{TMP}\nv_lshl_add_u32 v{TMP}, v{TMP+1}, 7, v{TMP}")
        A(f"s_mul_i32 s30, s26, {36*9216}\ns_add_u32 s30, s30, s35\ns_and_b32 s30, s30, 0xffffff80")
        A(f"buffer_load_dword v{T2}, v{TMP}, s[12:15], s30 offen")
        A(f"buffer_load_dword v{T2+1}, v{TMP}, s[16:19], s30 offen")
        A(f"v_min_u32 v{TMP+2}, 161, v0\nv_lshlrev_b32 v{TMP+2}, 7, v{TMP+2}")
        A(f"s_mul_i32 s30, s25, 288\ns_mul_i32 s31, s26, 18\ns_add_u32 s30, s30, s31\ns_mul_i32 s30, s30, 1152")
        A(f"buffer_load_dword v{T2+2}, v{TMP+2}, s[20:23], s30 offen")
    for i in range(D):
        pre(i)
        if i == 0:
            for m in range(4):
                r, off = lds_rd(V_XR, units[('X', 0)]['slot'] * 4096 + m * 1024)
                A(f"ds_read_b128 {xreg(m, 0)}, v{r} offset:{off}")
        extra_reads(i)
        while dma_q and (i + 1) in bpos: dma(dma_q.pop(0))
    half = None
    over = 0
    for i, itx in enumerate(items):
        if i in (1, 72, 216, p20, p20 + 81): stamp(A)
        if itx['last']: sched_epilogue(i, itx)
        for m in range(4):
            acc = itx['acc'][m]
            c = "0" if itx['first'] else v(acc, 4)
            if itx['grp'][0] == 'n':
                assert (itx['unit'][2], m) in hread_done, (i, itx['unit'], m)
                assert itx['grp'][1] < 3 or itx['grp'][1] - 3 in stored
            A(f"v_mfma_f32_16x16x32_bf16 {v(acc,4)}, {v(slots[i],4)}, {itx['b'][m]}, {c}")
            n0 = A.ninstr
            if half is not None:
                dma_ld(half); half = None
            for x in timed.pop(i * 4 + m, []):
                if isinstance(x, tuple): push_defer(x[1])
                else: A(x)
            if m == 0: pre(i + D)
            if m == 1:
                nb = min([p for p in bpos if p > i + D] + [10 ** 6])
                left = nb - (i + D)
                nd = -(-len(dma_q) // max(left, 1)) if dma_q else 0
                for _ in range(nd - 1): dma(dma_q.pop(0))
                if nd:
                    half = dma_q.pop(0); dma_pre(half)
            if m == 2: extra_reads(i + D)
            cap = 2 if m < 3 else 1
            while A.ninstr - n0 < cap and h_read(i): pass
            while defer and A.ninstr - n0 < cap: emit_defer(defer.pop(0))
            over += max(0, A.ninstr - n0 - cap)
    for k in sorted(timed):
        for x in timed[k]:
            if isinstance(x, tuple): push_defer(x[1])
            else: A(x)
    while defer: emit_defer(defer.pop(0))
    A.label(fin)
    prof_end(A)
    A.label(end)
    A("s_endpgm")
    return descriptor(name, 512, 256)

import struct
def f32hex(x): return "0x%08x" % struct.unpack("<I", struct.pack("<f", x))[0]
def attn_core(A, VA, KP, VOFF, Q, ROWG, SMASK, SP, R):
    B = [R + 10 * i for i in range(4)]
    LG = R + 40
    OA = R + 48
    T = R + 66
    A(f"s_mov_b32 s{SP}, 0x05040100\ns_mov_b32 s{SP+1}, 0x07060302\ns_mov_b32 s{SP+2}, {f32hex(1.4426950408889634)}")
    def load9(dst, byteoff):
        A(f"v_add_u32 v{T+7}, {byteoff}, v{VA}")
        for d in range(0, 8, 2):
            A(f"ds_read2_b32 v[{dst+d}:{dst+d+1}], v{T+7} offset0:{d} offset1:{d+1}")
        A(f"ds_read_b32 v{dst+8}, v{T+7} offset:32")
    def koff(j): return (14 - 2 * j) * KP
    for j in range(4): load9(B[j], koff(j))
    for j in range(0, 8, 2):
        b0, b1 = B[j % 4], B[(j + 1) % 4]
        for d in range(9):
            for (jj, b) in ((j, b0), (j + 1, b1)):
                A(f"v_dot2_f32_bf16 v{LG+jj}, v{Q+d}, v{b+d}, " + ("0" if d == 0 else f"v{LG+jj}"))
        if j < 4:
            load9(b0, koff(j + 4)); load9(b1, koff(j + 5))
        else:
            load9(b0, koff(j - 4) + VOFF); load9(b1, koff(j - 3) + VOFF)
    for j in range(8): round_bf16(A, LG + j)
    for j in range(8): A(f"v_mul_f32 v{LG+j}, {f32hex(18 ** -0.5)}, v{LG+j}")
    for j in range(8): round_bf16(A, LG + j)
    nm = A.newlabel("nomask")
    A(f"s_cmp_eq_u32 s{SMASK}, 0\ns_cbranch_scc1 {nm}")
    A(f"v_mov_b32 v{T}, 0xce6e0000")
    for j in range(1, 8):
        A(f"v_cmp_gt_u32 vcc, {2*j}, v{ROWG}")
        A(f"v_cndmask_b32 v{LG+j}, v{LG+j}, v{T}, vcc")
    A.label(nm)
    A(f"v_max3_f32 v{T}, v{LG}, v{LG+1}, v{LG+2}")
    A(f"v_max3_f32 v{T+1}, v{LG+3}, v{LG+4}, v{LG+5}")
    A(f"v_max3_f32 v{T}, v{T}, v{LG+6}, v{LG+7}")
    A(f"v_max_f32 v{T}, v{T}, v{T+1}")
    for j in range(8): A(f"v_sub_f32 v{LG+j}, v{LG+j}, v{T}")
    for j in range(8): A(f"v_mul_f32 v{LG+j}, s{SP+2}, v{LG+j}")
    for j in range(8): A(f"v_exp_f32 v{LG+j}, v{LG+j}")
    A(f"v_add_f32 v{T}, v{LG}, v{LG+1}\nv_add_f32 v{T+1}, v{LG+2}, v{LG+3}\nv_add_f32 v{T+2}, v{LG+4}, v{LG+5}\nv_add_f32 v{T+3}, v{LG+6}, v{LG+7}")
    A(f"v_add_f32 v{T}, v{T}, v{T+1}\nv_add_f32 v{T+2}, v{T+2}, v{T+3}\nv_add_f32 v{T}, v{T}, v{T+2}")
    A(f"v_rcp_f32 v{T}, v{T}")
    for j in range(8): A(f"v_mul_f32 v{LG+j}, v{LG+j}, v{T}")
    for p in range(4): A(f"v_cvt_pk_bf16_f32 v{LG+p}, v{LG+2*p}, v{LG+2*p+1}")
    for p in range(4):
        b0, b1 = B[(2 * p) % 4], B[(2 * p + 1) % 4]
        for d in range(9):
            t = T + (d % 3) * 2
            A(f"v_perm_b32 v{t}, v{b1+d}, v{b0+d}, s{SP}")
            A(f"v_perm_b32 v{t+1}, v{b1+d}, v{b0+d}, s{SP+1}")
            A(f"v_dot2_f32_bf16 v{OA+2*d}, v{t}, v{LG+p}, " + ("0" if p == 0 else f"v{OA+2*d}"))
            A(f"v_dot2_f32_bf16 v{OA+2*d+1}, v{t+1}, v{LG+p}, " + ("0" if p == 0 else f"v{OA+2*d+1}"))
        if p < 2:
            load9(b0, koff(2 * p + 4) + VOFF); load9(b1, koff(2 * p + 5) + VOFF)
    for d in range(9): A(f"v_cvt_pk_bf16_f32 v{Q+d}, v{OA+2*d}, v{OA+2*d+1}")

def wave_reduce_q(A, x, t):
    A(f"v_mov_b32 v{t}, v{x}")
    A(f"v_permlane16_swap_b32 v{x}, v{t}")
    A(f"v_add_f32 v{x}, v{x}, v{t}")
    A(f"v_mov_b32 v{t}, v{x}")
    A(f"v_permlane32_swap_b32 v{x}, v{t}")
    A(f"v_add_f32 v{x}, v{x}, v{t}")

K2_O = 73728
K2_ST = K2_O + 16 * 1168
K2_LDS = K2_ST + 2 * 768
def gen_k2(A, name, NPF=15, RING=26):
    kernel_begin(A, name)
    end = A.newlabel("end")
    A(f"s_cmp_ge_u32 s2, 128\ns_cbranch_scc1 {end}")
    prof_begin(A)
    fin = A.newlabel("fin")
    A(f"s_load_dwordx2 s[4:5], s[0:1], {KA_WS}")
    A("v_lshrrev_b32 v1, 6, v0")
    A("v_and_b32 v2, 63, v0")
    A("v_readfirstlane_b32 s24, v1")
    A("v_mul_u32_u24 v3, 7282, v0\nv_lshrrev_b32 v3, 20, v3")
    A("v_mul_u32_u24 v4, 144, v3\nv_sub_u32 v4, v0, v4")
    A("v_lshlrev_b32 v4, 4, v4\nv_add_u32 v4, 1152, v4")
    A("s_lshl_b32 s25, s2, 4")
    A("s_sub_u32 s26, s25, 14")
    A("v_add_u32 v3, s26, v3")
    A("s_lshl_b32 s27, s24, 10")
    A("v_lshlrev_b32 v5, 4, v2")
    A("v_lshrrev_b32 v6, 5, v0")
    A("v_and_b32 v7, 31, v0")
    A("v_mul_u32_u24 v7, 36, v7")
    A("v_add_u32 v8, s25, v6")
    A("v_mul_u32_u24 v9, 3456, v8\nv_add_u32 v9, v9, v7")
    A("v_mul_u32_u24 v10, 2304, v6\nv_add_u32 v10, v10, v7")
    A(f"v_mul_u32_u24 v11, 1168, v6\nv_add_u32 v11, v11, v7\nv_add_u32 v11, {K2_O}, v11")
    A(f"v_and_b32 v12, 15, v2\nv_mul_u32_u24 v13, 1168, v12\nv_and_b32 v14, 48, v2\nv_add_u32 v13, v13, v14\nv_add_u32 v13, {K2_O}, v13")
    A(f"v_mul_u32_u24 v14, 48, v12\nv_add_u32 v14, {K2_ST}, v14")
    A("v_lshl_add_u32 v15, v1, 2, v14")
    A("s_cmp_eq_u32 s2, 0\ns_cselect_b32 s28, 1, 0")
    A("s_waitcnt lgkmcnt(0)")
    srd(A, 8, 4, WS_QKV, QKV_B)
    srd(A, 12, 4, WS_WOF, WOF_B)
    srd(A, 16, 4, WS_XP, ACT)
    srd(A, 20, 4, WS_XN, ACT)
    Q = 16; RES = 26; W = 34; AR = 94; ACC = 152; OB = 140
    assert W + 4 * NPF <= AR and W + 4 * RING <= OB
    for it in range(8):
        A(f"v_max_i32 v{AR}, 0, v3")
        A(f"v_mul_u32_u24 v{AR}, 3456, v{AR}")
        A(f"v_add_u32 v{AR}, v{AR}, v4")
        A(f"s_add_u32 m0, s27, {it*9216}")
        if it < 7: A("v_add_u32 v3, 4, v3")
        A(f"buffer_load_dwordx4 v{AR}, s[8:11], 0 offen lds")
    A(f"buffer_load_dwordx4 v[{Q}:{Q+3}], v9, s[8:11], 0 offen")
    A(f"buffer_load_dwordx4 v[{Q+4}:{Q+7}], v9, s[8:11], 0 offen offset:16")
    tq = A(f"buffer_load_dword v{Q+8}, v9, s[8:11], 0 offen offset:32")
    A("s_mul_i32 s29, s2, 18432\ns_lshl_b32 s30, s24, 11\ns_add_u32 s29, s29, s30")
    A(f"buffer_load_dwordx4 v[{RES}:{RES+3}], v5, s[16:19], s29 offen")
    A(f"buffer_load_dwordx4 v[{RES+4}:{RES+7}], v5, s[16:19], s29 offen offset:1024")
    A("s_mul_i32 s30, s24, 73728\ns_add_u32 s31, s30, 36864")
    def wload(f):
        ks, p, tt = f >> 2, (f >> 1) & 1, f & 1
        r = W + 4 * (f % RING)
        A(f"buffer_load_dwordx4 v[{r}:{r+3}], v5, s[12:15], s{30+p} offen offset:{(ks & 1)*2048 + tt*1024}")
        if (ks & 1) and tt: A(f"s_add_u32 s{30+p}, s{30+p}, 4096")
    for f in range(NPF): wload(f)
    A.wait(vm=tq)
    A("s_barrier")
    skip = A.newlabel("skip")
    A(f"s_cmp_eq_u32 s24, 8\ns_cbranch_scc1 {skip}")
    attn_core(A, 10, 2304, 1152, Q, 8, 28, 40, AR)
    for d in range(0, 8, 2):
        A(f"ds_write2_b32 v11, v{Q+d}, v{Q+d+1} offset0:{d} offset1:{d+1}")
    A(f"ds_write_b32 v11, v{Q+8} offset:32")
    A.label(skip)
    for f in range(NPF, RING): wload(f)
    A("s_waitcnt lgkmcnt(0)")
    A("s_barrier")
    def oread(ks):
        r = OB + 4 * (ks % 3)
        A(f"ds_read_b128 v[{r}:{r+3}], v13 offset:{ks*64}")
    oread(0); oread(1)
    for ks in range(18):
        if ks + 2 < 18: oread(ks + 2)
        for t in range(4):
            f = ks * 4 + t
            r = W + 4 * (f % RING); acc = ACC + 4 * t; ob = OB + 4 * (ks % 3)
            A(f"v_mfma_f32_16x16x32_bf16 v[{acc}:{acc+3}], v[{r}:{r+3}], v[{ob}:{ob+3}], " + ("0" if ks == 0 else f"v[{acc}:{acc+3}]"))
            if f + RING < 72: wload(f + RING)
    X = ACC; T = W
    for j in range(8):
        A(f"v_cvt_pk_bf16_f32 v{X+2*j}, 0, v{X+2*j}\nv_cvt_pk_bf16_f32 v{X+2*j+1}, 0, v{X+2*j+1}")
        unpack_lo(A, T, RES + j); unpack_hi(A, T + 1, RES + j)
        A(f"v_add_f32 v{X+2*j}, v{X+2*j}, v{T}\nv_add_f32 v{X+2*j+1}, v{X+2*j+1}, v{T+1}")
        A(f"v_cvt_pk_bf16_f32 v{RES+j}, v{X+2*j}, v{X+2*j+1}")
        unpack_lo(A, X + 2 * j, RES + j); unpack_hi(A, X + 2 * j + 1, RES + j)
    A(f"buffer_store_dwordx4 v[{RES}:{RES+3}], v5, s[16:19], s29 offen")
    A(f"buffer_store_dwordx4 v[{RES+4}:{RES+7}], v5, s[16:19], s29 offen offset:1024")
    def xreduce(x, area, res):
        wave_reduce_q(A, x, T + 1)
        A("s_mov_b64 exec, 0xffff")
        A(f"ds_write_b32 v15, v{x} offset:{area}")
        A("s_mov_b64 exec, -1")
        A("s_waitcnt lgkmcnt(0)")
        A("s_barrier")
        A(f"ds_read_b128 v[{T+4}:{T+7}], v14 offset:{area}")
        A(f"ds_read_b128 v[{T+8}:{T+11}], v14 offset:{area+16}")
        A(f"ds_read_b32 v{T+12}, v14 offset:{area+32}")
        A(f"v_add_f32 v{res}, v{T+4}, v{T+5}")
        for j in range(6, 13): A(f"v_add_f32 v{res}, v{res}, v{T+j}")
        A(f"v_mul_f32 v{res}, 0x3ae38e39, v{res}")
    A(f"v_add_f32 v{T}, v{X}, v{X+1}")
    for j in range(2, 16): A(f"v_add_f32 v{T}, v{T}, v{X+j}")
    xreduce(T, 0, T + 2)
    A(f"v_sub_f32 v{T+1}, v{X}, v{T+2}\nv_mul_f32 v{T}, v{T+1}, v{T+1}")
    for j in range(1, 16):
        A(f"v_sub_f32 v{T+1}, v{X+j}, v{T+2}\nv_fmac_f32 v{T}, v{T+1}, v{T+1}")
    xreduce(T, 768, T + 3)
    ln_finish(A, X, 16, T + 2, T + 3, T, T + 16)
    A(f"buffer_store_dwordx4 v[{T+16}:{T+19}], v5, s[20:23], s29 offen")
    A(f"buffer_store_dwordx4 v[{T+20}:{T+23}], v5, s[20:23], s29 offen offset:1024")
    A.label(fin)
    prof_end(A)
    A.label(end)
    A("s_endpgm")
    return descriptor(name, 168, 168)

K1C_LDS = 131072
QP = 232
OST = 40960
def gen_k1c(A, name, warm=1):
    kernel_begin(A, name)
    end = A.newlabel("end")
    A(f"s_cmp_ge_u32 s2, 256\ns_cbranch_scc1 {end}")
    prof_begin(A)
    fin = A.newlabel("fin")
    A(f"s_load_dwordx2 s[4:5], s[0:1], {KA_WS}")
    A(f"s_load_dwordx4 s[40:43], s[0:1], {KA_WG}")
    A(f"s_load_dwordx2 s[44:45], s[0:1], {KA_WD}")
    A("v_lshrrev_b32 v1, 6, v0")
    A("v_and_b32 v2, 63, v0")
    A("v_readfirstlane_b32 s24, v1")
    A("s_and_b32 s25, s2, 7\ns_lshr_b32 s26, s2, 3")
    A("s_lshr_b32 s27, s25, 1\ns_lshl_b32 s27, s27, 2\ns_and_b32 s28, s26, 3\ns_add_u32 s27, s27, s28")
    A("s_and_b32 s28, s25, 1\ns_lshl_b32 s28, s28, 3\ns_lshr_b32 s29, s26, 2\ns_add_u32 s28, s28, s29")
    A("v_lshlrev_b32 v3, 4, v2")
    A("s_lshl_b32 s30, s24, 10")
    A("s_add_u32 s31, s30, 2048\nv_add_u32 v4, s31, v3")
    A("v_add_u32 v5, 64512, v3\nv_add_u32 v6, 64512, v4")
    A("s_lshl_b32 s31, s27, 3\ns_lshl_b32 s32, s24, 1\ns_add_u32 s32, s32, s31\ns_mov_b32 s46, s32\ns_mul_i32 s32, s32, 18432\ns_add_u32 s33, s32, 18432")
    A("s_max_u32 s31, s31, 1\ns_sub_u32 s31, s31, 1\ns_mul_i32 s34, s31, 18432")
    A(f"s_mul_i32 s35, s28, {126*1024}\ns_add_u32 s35, s35, s30")
    A("s_waitcnt lgkmcnt(0)")
    srd(A, 8, 4, WS_XN, ACT)
    srd(A, 12, 4, WS_WQF, WQF_B)
    srd(A, 16, 4, WS_O, ACT + GR_B)
    def xr(t, ks): return a((ks * 3 + t) * 4, 4)
    dtok = {}; nd = [0]
    def issue(ks):
        while nd[0] <= (7 * ks + 6) // 4:
            i = nd[0]
            A(f"s_add_u32 m0, s30, {i*4096}")
            if i: A("s_add_u32 s35, s35, 4096")
            dtok[i] = A("buffer_load_dwordx4 v3, s[12:15], s35 offen lds")
            nd[0] += 1
        for t in range(3):
            A(f"buffer_load_dwordx4 {xr(t, ks)}, v3, s[8:11], s{32+t} offen offset:{(ks%4)*1024}")
            if ks % 4 == 3: A(f"s_add_u32 s{32+t}, s{32+t}, 4096")
    AH = 12
    for ks in range(AH): issue(ks)
    A(f"v_and_b32 v10, 15, v2\nv_lshrrev_b32 v11, 4, v2")
    A(f"v_mul_u32_u24 v7, {QP}, v10\nv_lshl_add_u32 v7, v11, 3, v7")
    A(f"s_mul_i32 s31, s24, {32*QP}\ns_add_u32 s31, s31, {16*QP}\nv_add_u32 v8, s31, v7")
    A("s_lshl_b32 s31, s24, 5\nv_add_u32 v9, s31, v7")
    A("v_lshrrev_b32 v12, 1, v0\nv_and_b32 v13, 1, v0\nv_mul_u32_u24 v13, 36, v13")
    A(f"v_mul_u32_u24 v14, {QP}, v12\nv_add_u32 v14, v14, v13\nv_add_u32 v14, {2*QP+72}, v14")
    A(f"v_mul_u32_u24 v15, 72, v12\nv_add_u32 v15, v15, v13\nv_add_u32 v15, {OST}, v15")
    A("s_lshl_b32 s31, s27, 7\nv_add_u32 v12, s31, v12")
    A("s_cmp_eq_u32 s27, 0\ns_cselect_b32 s36, 1, 0")
    ACC = 16; FR = 80
    groups = [[0], [1, 2], [3, 4, 5], [6, 7, 8], [9, 10, 11], [12, 13, 14], [15, 16, 17]]
    gstart = {g[0]: g[-1] for g in groups}
    def rd(ks, t):
        if ks >= 18: return
        if t == 0 and ks in gstart:
            A.wait(vm=dtok[(7 * gstart[ks] + 6) // 4])
            A("s_barrier")
        r = FR + (ks & 1) * 32 + 4 * t
        off = ks * 7168 - (64512 if ks >= 9 else 0)
        if t < 7: A(f"ds_read_b128 v[{r}:{r+3}], v{5 if ks >= 9 else 3} offset:{off + t*1024}")
        else: A(f"ds_read_b128 v[{r}:{r+3}], v{6 if ks >= 9 else 4} offset:{off}")
    for t in range(8): rd(0, t)
    stamp(A)
    for ks in range(18):
        if ks + AH < 18: issue(ks + AH)
        if ks + AH == 18:
            A("v_mov_b32 v144, -1\nv_mov_b32 v145, -1\nv_mov_b32 v146, -1\nv_mov_b32 v147, -1")
            A(f"s_mul_i32 s31, s2, 384\ns_add_u32 s31, s31, {ACT}")
            A("v_lshlrev_b32 v148, 4, v0")
            A("v_cmp_gt_u32 vcc, 24, v0\ns_and_saveexec_b64 s[38:39], vcc")
            A("buffer_store_dwordx4 v[144:147], v148, s[16:19], s31 offen")
            A("s_mov_b64 exec, s[38:39]")
            if warm:
                srd(A, 48, 40, 0, 576 * 9216); srd(A, 52, 42, 0, 576 * 9216); srd(A, 56, 44, 0, 576 * 9216)
                A("v_min_u32 v148, 161, v0\nv_mul_u32_u24 v149, 7282, v148\nv_lshrrev_b32 v149, 16, v149")
                A(f"v_mul_u32_u24 v149, {9216-1152}, v149\nv_lshlrev_b32 v148, 7, v148\nv_add_u32 v149, v149, v148")
                A(f"s_mul_i32 s31, s26, {18*9216}\ns_mul_i32 s37, s25, 1152\ns_add_u32 s31, s31, s37")
                A("buffer_load_dword v150, v149, s[48:51], s31 offen")
                A("buffer_load_dword v151, v149, s[52:55], s31 offen")
                A(f"s_mul_i32 s31, s25, 576\ns_mul_i32 s37, s26, 18\ns_add_u32 s31, s31, s37\ns_mul_i32 s31, s31, 1152")
                A("buffer_load_dword v152, v148, s[56:59], s31 offen")
        n = 0
        for t in range(8):
            r = FR + (ks & 1) * 32 + 4 * t
            lst = [(t * 2, 0), (t * 2 + 1, 1)] if t < 7 else [(14, 2)]
            if t == 6: lst.append((15, 2))
            for (ai, xt) in lst:
                acc = ACC + 4 * ai
                A(f"v_mfma_f32_16x16x32_bf16 v[{acc}:{acc+3}], v[{r}:{r+3}], {xr(xt, ks)}, " + ("0" if ks == 0 else f"v[{acc}:{acc+3}]"))
                if n % 2 == 0: rd(ks + 1, n // 2)
                n += 1
    stamp(A)
    A("s_barrier")
    for ai in range(16):
        acc = ACC + 4 * ai
        A(f"v_cvt_pk_bf16_f32 v{acc}, v{acc}, v{acc+1}\nv_cvt_pk_bf16_f32 v{acc+1}, v{acc+2}, v{acc+3}")
        if ai < 14: A(f"ds_write_b64 v8, v[{acc}:{acc+1}] offset:{(ai & 1)*16*QP + (ai >> 1)*32}")
        elif ai == 14: A(f"ds_write_b64 v9, v[{acc}:{acc+1}] offset:64")
        else: A(f"ds_write_b64 v7, v[{acc}:{acc+1}] offset:{6*32}")
    A("s_waitcnt lgkmcnt(0)")
    A("s_barrier")
    Q = 16; AR = 32
    A(f"v_add_u32 v13, {14*QP-72}, v14")
    for d in range(0, 8, 2):
        A(f"ds_read2_b32 v[{Q+d}:{Q+d+1}], v13 offset0:{d} offset1:{d+1}")
    A(f"ds_read_b32 v{Q+8}, v13 offset:32")
    attn_core(A, 14, QP, 72, Q, 12, 36, 60, AR)
    for d in range(0, 8, 2):
        A(f"ds_write2_b32 v15, v{Q+d}, v{Q+d+1} offset0:{d} offset1:{d+1}")
    A(f"ds_write_b32 v15, v{Q+8} offset:32")
    stamp(A)
    A("s_and_b32 s31, s28, 1\ns_lshl_b32 s37, s31, 3")
    A(f"s_mul_i32 s38, s24, {32*72}\ns_add_u32 s38, s38, {OST}\ns_add_u32 s39, s38, s37")
    A("v_mul_u32_u24 v4, 72, v10\nv_lshl_add_u32 v4, v11, 4, v4\nv_add_u32 v4, s39, v4")
    A("s_xor_b32 s39, s31, 1\ns_lshl_b32 s39, s39, 6\ns_add_u32 s39, s39, s38")
    A("v_mul_u32_u24 v5, 72, v2\nv_add_u32 v5, s39, v5")
    A("s_waitcnt lgkmcnt(0)")
    A(f"ds_read2_b64 v[32:35], v4 offset0:0 offset1:1")
    A(f"ds_read2_b64 v[36:39], v4 offset0:{16*9} offset1:{16*9+1}")
    A("ds_read_b64 v[40:41], v5")
    A("s_mul_i32 s38, s28, 72\ns_add_u32 s38, s38, s37\ns_lshl_b32 s38, s38, 4\ns_mul_i32 s39, s46, 18432\ns_add_u32 s38, s38, s39\ns_add_u32 s39, s38, 18432")
    A("s_mul_i32 s37, s31, 1272\ns_add_u32 s47, s38, 1024\ns_sub_u32 s47, s47, s37")
    A("v_lshrrev_b32 v6, 4, v2\nv_mul_u32_u24 v6, 18432, v6\nv_lshl_add_u32 v6, v10, 4, v6")
    A("buffer_store_dwordx4 v[32:35], v3, s[16:19], s38 offen")
    A("buffer_store_dwordx4 v[36:39], v3, s[16:19], s39 offen")
    A("s_mov_b32 exec_hi, 0")
    A("buffer_store_dwordx2 v[40:41], v6, s[16:19], s47 offen")
    A.label(fin)
    prof_end(A)
    A.label(end)
    A("s_endpgm")
    return descriptor(name, 512, 256)

K2D_LDS = 110592
def gen_k2d(A, name):
    kernel_begin(A, name)
    end = A.newlabel("end")
    A(f"s_cmp_ge_u32 s2, 192\ns_cbranch_scc1 {end}")
    prof_begin(A)
    fin = A.newlabel("fin")
    A(f"s_load_dwordx2 s[4:5], s[0:1], {KA_WS}")
    A("v_lshrrev_b32 v1, 6, v0")
    A("v_and_b32 v2, 63, v0")
    A("v_readfirstlane_b32 s24, v1")
    A("s_and_b32 s25, s2, 7\ns_lshr_b32 s26, s2, 3")
    A("s_mul_i32 s27, s26, 43\ns_lshr_b32 s27, s27, 8")
    A("s_mul_i32 s28, s27, 6\ns_sub_u32 s28, s26, s28")
    A("s_lshl_b32 s25, s25, 2\ns_add_u32 s27, s27, s25")
    A("s_lshl_b32 s29, s27, 2\ns_add_u32 s29, s29, s24")
    A("v_lshlrev_b32 v3, 4, v2\nv_add_u32 v4, 36864, v3\nv_add_u32 v5, 36864, v4")
    A("s_lshl_b32 s30, s24, 10")
    A("s_mul_i32 s32, s28, 110592\ns_add_u32 s32, s32, s30\ns_add_u32 s33, s32, 36864\ns_add_u32 s34, s33, 36864")
    A("s_mul_i32 s35, s29, 18432")
    A("s_mul_i32 s36, s28, 3072\ns_add_u32 s36, s36, s35")
    A("s_waitcnt lgkmcnt(0)")
    stamp(A)
    srd(A, 8, 4, WS_O, ACT + GR_B)
    srd(A, 12, 4, WS_WOF, WOF_B)
    srd(A, 16, 4, WS_XP, ACT)
    srd(A, 20, 4, WS_XN, ACT)
    OB = 16; RES = 88; ACC = 100; FR = 124
    dtok = {}
    for k2 in range(9):
        for p in range(3):
            A(f"s_add_u32 m0, s30, {p*36864 + k2*4096}")
            if k2: A(f"s_add_u32 s{32+p}, s{32+p}, 4096")
            dtok[k2] = A(f"buffer_load_dwordx4 v3, s[12:15], s{32+p} offen lds")
        for ks in (2 * k2, 2 * k2 + 1):
            A(f"buffer_load_dwordx4 v[{OB+4*ks}:{OB+4*ks+3}], v3, s[8:11], s35 offen offset:{(ks%4)*1024}")
            if ks % 4 == 3: A("s_add_u32 s35, s35, 4096")
    for p in range(3):
        A(f"buffer_load_dwordx4 v[{RES+4*p}:{RES+4*p+3}], v3, s[16:19], s36 offen offset:{p*1024}")
    stamp(A)
    A(f"v_and_b32 v6, 15, v2\ns_lshl_b32 s31, s29, 4\nv_add_u32 v6, s31, v6\nv_mul_u32_u24 v6, 48, v6\nv_add_u32 v6, {ACT}, v6")
    A("s_lshl_b32 s37, s28, 3")
    gstart = {0: 0, 1: 1, 2: 3, 4: 5, 6: 8}
    seq = [(ks, p, tt) for ks in range(18) for p in range(3) for tt in range(2)]
    NF = 12; D = 8
    def rd(i):
        if i >= len(seq): return
        ks, p, tt = seq[i]
        if p == 0 and tt == 0 and ks % 2 == 0 and ks // 2 in gstart:
            A.wait(vm=dtok[gstart[ks // 2]])
            A("s_barrier")
        r = FR + 4 * (i % NF)
        A(f"ds_read_b128 v[{r}:{r+3}], v{3+p} offset:{ks*2048 + tt*1024}")
    for i in range(D): rd(i)
    stamp(A)
    for i, (ks, p, tt) in enumerate(seq):
        r = FR + 4 * (i % NF); acc = ACC + (p * 2 + tt) * 4
        A(f"v_mfma_f32_16x16x32_bf16 v[{acc}:{acc+3}], v[{r}:{r+3}], v[{OB+4*ks}:{OB+4*ks+3}], " + ("0" if ks == 0 else f"v[{acc}:{acc+3}]"))
        rd(i + D)
    stamp(A)
    X = ACC; T = 16
    for j in range(12):
        A(f"v_cvt_pk_bf16_f32 v{X+2*j}, 0, v{X+2*j}\nv_cvt_pk_bf16_f32 v{X+2*j+1}, 0, v{X+2*j+1}")
        unpack_lo(A, T, RES + j); unpack_hi(A, T + 1, RES + j)
        A(f"v_add_f32 v{X+2*j}, v{X+2*j}, v{T}\nv_add_f32 v{X+2*j+1}, v{X+2*j+1}, v{T+1}")
        A(f"v_cvt_pk_bf16_f32 v{RES+j}, v{X+2*j}, v{X+2*j+1}")
        unpack_lo(A, X + 2 * j, RES + j); unpack_hi(A, X + 2 * j + 1, RES + j)
    A(f"v_add_f32 v{T}, v{X}, v{X+1}\nv_add_f32 v{T+1}, v{X+2}, v{X+3}")
    for j in range(4, 24, 2): A(f"v_add_f32 v{T}, v{T}, v{X+j}\nv_add_f32 v{T+1}, v{T+1}, v{X+j+1}")
    A(f"v_add_f32 v{T}, v{T}, v{T+1}")
    wave_reduce_q(A, T, T + 2)
    A(f"v_mul_f32 v{T+2}, {f32hex(1/96)}, v{T}")
    A(f"v_sub_f32 v{T+3}, v{X}, v{T+2}\nv_sub_f32 v{T+4}, v{X+1}, v{T+2}\nv_mul_f32 v{T+1}, v{T+3}, v{T+3}\nv_mul_f32 v{T+5}, v{T+4}, v{T+4}")
    for j in range(2, 24, 2):
        A(f"v_sub_f32 v{T+3}, v{X+j}, v{T+2}\nv_sub_f32 v{T+4}, v{X+j+1}, v{T+2}\nv_fmac_f32 v{T+1}, v{T+3}, v{T+3}\nv_fmac_f32 v{T+5}, v{T+4}, v{T+4}")
    A(f"v_add_f32 v{T+1}, v{T+1}, v{T+5}")
    wave_reduce_q(A, T + 1, T + 2)
    A("s_mov_b64 exec, 0xffff")
    A(f"buffer_store_dwordx2 v[{T}:{T+1}], v6, s[8:11], s37 offen sc1")
    A("s_mov_b64 exec, -1")
    for p in range(3):
        A(f"buffer_store_dwordx4 v[{RES+4*p}:{RES+4*p+3}], v3, s[16:19], s36 offen offset:{p*1024}")
    G = 24
    A("s_mov_b32 s38, 0")
    lp = A.newlabel("poll"); dn = A.newlabel("polld")
    A.label(lp)
    for p in range(3):
        A(f"buffer_load_dwordx4 v[{G+4*p}:{G+4*p+3}], v6, s[8:11], 0 offen offset:{p*16} sc1")
    A("s_waitcnt vmcnt(0)")
    A(f"v_max3_u32 v{T+2}, v{G+1}, v{G+3}, v{G+5}\nv_max3_u32 v{T+3}, v{G+7}, v{G+9}, v{G+11}\nv_max_u32 v{T+2}, v{T+2}, v{T+3}")
    A(f"v_cmp_eq_u32 vcc, -1, v{T+2}")
    A(f"s_add_u32 s38, s38, 1")
    A(f"s_cbranch_vccz {dn}")
    A(f"s_cmp_lt_u32 s38, 0x40000\ns_cbranch_scc1 {lp}")
    A.label(dn)
    stamp(A)
    A(f"v_add_f32 v{T}, v{G}, v{G+2}\nv_add_f32 v{T+1}, v{G+1}, v{G+3}")
    for c in range(2, 6): A(f"v_add_f32 v{T}, v{T}, v{G+2*c}\nv_add_f32 v{T+1}, v{T+1}, v{G+2*c+1}")
    A(f"v_mul_f32 v{T+2}, 0x3ae38e39, v{T}")
    A(f"s_mov_b32 s39, {f32hex(1/96)}\ns_mov_b32 s40, {f32hex(96.0)}")
    A(f"v_mov_b32 v{T+4}, 0")
    for c in range(6):
        A(f"v_fma_f32 v{T+3}, v{G+2*c}, s39, -v{T+2}")
        A(f"v_fmac_f32 v{T+4}, v{T+3}, v{T+3}")
    A(f"v_fma_f32 v{T+3}, v{T+4}, s40, v{T+1}")
    A(f"v_mul_f32 v{T+3}, 0x3ae38e39, v{T+3}")
    ln_finish(A, X, 24, T + 2, T + 3, T, G)
    for p in range(3):
        A(f"buffer_store_dwordx4 v[{G+4*p}:{G+4*p+3}], v3, s[20:23], s36 offen offset:{p*1024}")
    A.label(fin)
    prof_end(A)
    A.label(end)
    A("s_endpgm")
    return descriptor(name, 176, 176)
```

```python
import sys
sys.path.insert(0, "dev")
from gen import *
NAME = "interleave_layers__sliding_local_dilated__glu_gated_reglu__prompt"
def build_all(**kw):
    A = Asm()
    hdr = open(f"cdna_kernels/{NAME}.s.ref").read().split("; Override")[0]
    K = dict(k0=("k0_kernel", 256, 576, 1024), k1=("k1c_kernel", 256, 256, K1C_LDS), k2=("k2d_kernel", 192, 256, K2D_LDS), k3=("k3_kernel", 256, 256, 163840),
             k4a=("k4a_kernel", 256, 576, 1024), k4b=("k4b_kernel", 256, 576, 1024))
    launches = [K[x] for x in "k0 k1 k2 k3 k4a k1 k2 k3 k4b".split()]
    descs = []
    A.raw('.amdgcn_target "amdgcn-amd-amdhsa--gfx950"\n.text')
    descs.append(gen_rowk(A, "k0_kernel", 0))
    descs.append(gen_rowk(A, "k4a_kernel", 1))
    descs.append(gen_rowk(A, "k4b_kernel", 2))
    descs.append(gen_k1c(A, "k1c_kernel", **kw.get("k1", {})))
    descs.append(gen_k2d(A, "k2d_kernel", **kw.get("k2", {})))
    n0 = A.nops_inserted; i0 = A.ninstr
    descs.append(gen_k3(A, "k3_kernel", **kw.get('k3', {})))
    print("k3 nops", A.nops_inserted - n0, "instr", A.ninstr - i0)
    txt = hdr + "".join(f"; @launch kernel={k} grid=({g},1,1) block=({b},1,1) lds={l}\n" for k, g, b, l in launches)
    txt += A.text() + '.section .rodata,"a"\n' + "".join(descs)
    return txt
if __name__ == "__main__":
    out = sys.argv[1] if len(sys.argv) > 1 else f"cdna_kernels/{NAME}.s"
    if len(sys.argv) > 2 and sys.argv[2].startswith("prof"): PROF[0] = 2 if sys.argv[2] == "prof2" else 1
    kw = eval(sys.argv[3]) if len(sys.argv) > 3 else {}
    open(out, "w").write(build_all(**kw))
```

```python
import sys
sys.path.insert(0, "dev")
from asmlib import *

S_, D_, F_ = 2048, 576, 4608
ACT = S_ * D_ * 2
WS_XP   = 0
WS_XN   = WS_XP + ACT
WS_QKV  = WS_XN + ACT
QKV_B   = S_ * 3456
WS_WOF  = WS_QKV + QKV_B
WOF_B   = 576 * 576 * 2
WS_PART = WS_WOF + WOF_B
PART_B  = 16 * ACT
WS_WQF  = WS_PART + PART_B
WQF_B   = 16 * 126 * 1024
WS_O    = WS_WQF + WQF_B
WS_GR   = WS_O + ACT
GR_B    = 2048 * 48
WS_END  = WS_GR + GR_B
KA_X, KA_WQKV, KA_WO, KA_BX, KA_WG, KA_WU, KA_WD, KA_OUT, KA_DBG, KA_WS = [8 * i for i in range(10)]

WS_PROF = WS_END + (1 << 20)
PROF = [False]
SMOD = ['']
def prof_begin(A):
    if not PROF[0]: return
    A.nstamp = 1
    A("s_memrealtime s[88:89]")
    A("v_lshrrev_b32 v1, 6, v0\nv_readfirstlane_b32 s87, v1")
def stamp(A):
    if not PROF[0]: return
    assert A.nstamp < 6
    A(f"{'s_memtime' if PROF[0] == 2 else 's_memrealtime'} s[{88+2*A.nstamp}:{89+2*A.nstamp}]"); A.nstamp += 1
def prof_end(A):
    if not PROF[0]: return
    A("s_waitcnt vmcnt(0) lgkmcnt(0)")
    A("s_memrealtime s[100:101]")
    A(f"s_load_dwordx4 s[4:7], s[0:1], {KA_DBG}")
    A("s_waitcnt lgkmcnt(0)")
    A("s_lshr_b32 s4, s4, 9\ns_and_b32 s4, s4, 63\ns_lshl_b32 s4, s4, 9\ns_add_u32 s4, s4, s2\ns_lshl_b32 s4, s4, 4\ns_add_u32 s4, s4, s87\ns_lshl_b32 s4, s4, 5")
    srd(A, 8, 6, WS_PROF, 64 * 512 * 16 * 32)
    for i in range(7):
        A(f"v_mov_b32 v{i}, " + (f"s{88+2*i}" if (i < A.nstamp or i == 6) else "0"))
    A("s_getreg_b32 s5, hwreg(HW_REG_XCC_ID)\nv_mov_b32 v7, s5")
    A("v_mov_b32 v8, 0")
    A("s_mov_b64 exec, 1")
    A("buffer_store_dwordx4 v[0:3], v8, s[8:11], s4 offen")
    A("buffer_store_dwordx4 v[4:7], v8, s[8:11], s4 offen offset:16")

def srd(A, d, base_lo, off, nbytes):
    if off:
        A(f"s_add_u32 s{d}, s{base_lo}, {off}")
        A(f"s_addc_u32 s{d+1}, s{base_lo+1}, 0")
    else:
        A(f"s_mov_b32 s{d}, s{base_lo}")
        A(f"s_mov_b32 s{d+1}, s{base_lo+1}")
    A(f"s_mov_b32 s{d+2}, {nbytes}")
    A(f"s_mov_b32 s{d+3}, 0x20000")

def unpack_lo(A, d, src): A(f"v_lshlrev_b32 v{d}, 16, v{src}")
def unpack_hi(A, d, src): A(f"v_and_b32 v{d}, 0xffff0000, v{src}")

def wave_reduce_x8(A, x, t):
    A(f"v_add_f32_dpp v{x}, v{x}, v{x} row_ror:8 row_mask:0xf bank_mask:0xf")
    A(f"v_mov_b32 v{t}, v{x}")
    A(f"v_permlane16_swap_b32 v{x}, v{t}")
    A(f"v_add_f32 v{x}, v{x}, v{t}")
    A(f"v_mov_b32 v{t}, v{x}")
    A(f"v_permlane32_swap_b32 v{x}, v{t}")
    A(f"v_add_f32 v{x}, v{x}, v{t}")

def round_bf16(A, x, t=None):
    A(f"v_cvt_pk_bf16_f32 v{x}, 0, v{x}")

def ln_finish(A, X, nel, mean, var, T, outbase):
    round_bf16(A, mean)
    round_bf16(A, var)
    A(f"v_add_f32 v{var}, 0x3727c5ac, v{var}")
    round_bf16(A, var)
    A(f"v_sqrt_f32 v{var}, v{var}")
    round_bf16(A, var)
    A(f"v_rcp_f32 v{var}, v{var}")
    for j in range(0, nel, 2):
        A(f"v_sub_f32 v{X+j}, v{X+j}, v{mean}")
        A(f"v_sub_f32 v{X+j+1}, v{X+j+1}, v{mean}")
        A(f"v_cvt_pk_bf16_f32 v{T}, v{X+j}, v{X+j+1}")
        unpack_lo(A, X + j, T); unpack_hi(A, X + j + 1, T)
        A(f"v_mul_f32 v{X+j}, v{X+j}, v{var}")
        A(f"v_mul_f32 v{X+j+1}, v{X+j+1}, v{var}")
        A(f"v_cvt_pk_bf16_f32 v{outbase+j//2}, v{X+j}, v{X+j+1}")

XF_R = 48
def xf_wo_job(A, sf, dst):
    A(f"s_and_b32 s52, s{sf}, 1")
    A(f"s_lshr_b32 s53, s{sf}, 1")
    A("s_mul_i32 s54, s53, 3641\ns_lshr_b32 s54, s54, 16")
    A("s_mul_i32 s55, s54, 18\ns_sub_u32 s55, s53, s55")
    A("s_mul_i32 s55, s55, 36864\ns_lshl_b32 s54, s54, 6\ns_add_u32 s55, s55, s54\ns_lshl_b32 s52, s52, 5\ns_add_u32 s55, s55, s52")
    for j in range(8):
        A(f"buffer_load_ushort v{dst+j}, v{44 if j < 4 else 45}, s[60:63], s55 offen offset:{(j&3)*1152}")
    A(f"s_lshl_b32 s{sf}, s{sf}, 10\ns_add_u32 s{sf}, s{sf}, {WS_WOF}")
def xf_issue(A):
    srd(A, 56, 44, 0, 576 * 3456)
    srd(A, 60, 46, 0, WOF_B)
    srd(A, 64, 4, 0, WS_END)
    A("v_readfirstlane_b32 s47, v1")
    A("s_mul_i32 s49, s2, 9\ns_add_u32 s48, s47, s49")
    A("v_lshrrev_b32 v46, 4, v2\nv_and_b32 v47, 15, v2")
    A("v_mul_u32_u24 v44, 9216, v46\nv_lshl_add_u32 v44, v47, 1, v44\nv_add_u32 v45, 4608, v44")
    lwo = A.newlabel("xfwo"); lb = A.newlabel("xfb"); ld = A.newlabel("xfd")
    A(f"s_cmp_ge_u32 s48, 2016\ns_cbranch_scc1 {lwo}")
    A("s_mul_i32 s50, s48, 33289\ns_lshr_b32 s50, s50, 22")
    A("s_mul_i32 s51, s50, 126\ns_sub_u32 s51, s48, s51")
    A("s_mul_i32 s52, s51, 9363\ns_lshr_b32 s52, s52, 16")
    A("s_mul_i32 s53, s52, 7\ns_sub_u32 s53, s51, s53")
    A("s_lshr_b32 s54, s53, 1\ns_mul_i32 s54, s54, 576\ns_and_b32 s55, s53, 1\ns_mul_i32 s55, s55, 18\ns_add_u32 s54, s54, s55")
    A("v_add_u32 v43, s54, v47")
    A("v_bfe_u32 v42, v47, 1, 1\nv_lshrrev_b32 v41, 2, v47")
    A("v_mul_u32_u24 v40, 576, v42\nv_mul_u32_u24 v41, 18, v41\nv_add_u32 v40, v40, v41\nv_add_u32 v40, 576, v40")
    A("v_mul_u32_u24 v41, 18, v42")
    A("v_cmp_gt_u32 vcc, 8, v47\nv_cndmask_b32 v40, v41, v40, vcc")
    A("v_and_b32 v41, 1, v47\nv_add3_u32 v40, v40, v41, 16")
    A("s_cmp_eq_u32 s53, 6\ns_cselect_b64 vcc, -1, 0")
    A("v_cndmask_b32 v43, v43, v40, vcc")
    A("v_mul_u32_u24 v46, 13824, v46")
    A("v_lshl_add_u32 v46, v43, 1, v46")
    A(f"s_mul_i32 s52, s52, {32*3456}\ns_mul_i32 s50, s50, 72\ns_add_u32 s52, s52, s50")
    for j in range(8):
        A(f"buffer_load_ushort v{XF_R+j}, v46, s[56:59], s52 offen offset:{(j&1)*3456}")
        if j & 1 and j < 7: A(f"s_add_u32 s52, s52, {(2 if j != 3 else 14)*3456}")
    A(f"s_lshl_b32 s50, s48, 10\ns_add_u32 s50, s50, {WS_WQF}")
    A(f"s_branch {lb}")
    A.label(lwo)
    A.vm_issued -= 8
    for j in range(16): A.pend.pop(('v', XF_R + j), None)
    A("s_sub_u32 s50, s48, 2016")
    xf_wo_job(A, 50, XF_R)
    A.label(lb)
    A("s_lshl_b32 s48, s47, 8\ns_add_u32 s48, s48, s2")
    A(f"s_cmp_ge_u32 s48, 360\ns_cbranch_scc1 {ld}")
    A("s_add_u32 s51, s48, 288")
    xf_wo_job(A, 51, XF_R + 8)
    A.label(ld)
    A.vm_issued -= 8
    for j in range(16): A.pend.pop(('v', XF_R + j), None)
def k0_warm(A, which):
    for i, c in enumerate("gud"):
        if c not in which: continue
        A(f"s_load_dwordx2 s[68:69], s[0:1], {KA_WG + 8*i}")
        A("v_min_u32 v64, 161, v0\nv_lshlrev_b32 v64, 7, v64")
        A(f"s_mul_i32 s72, s2, {162*128}")
        A("s_waitcnt lgkmcnt(0)")
        A(f"s_mov_b32 s70, {576*9216}\ns_mov_b32 s71, 0x20000")
        A(f"buffer_load_dword v{65+i}, v64, s[68:71], s72 offen")
def xf_store(A):
    A("s_waitcnt vmcnt(0)")
    A("v_lshlrev_b32 v44, 4, v2")
    for j in range(4):
        A(f"v_lshl_or_b32 v{XF_R+j}, v{XF_R+1+2*j}, 16, v{XF_R+2*j}")
    A(f"buffer_store_dwordx4 v[{XF_R}:{XF_R+3}], v44, s[64:67], s50 offen {SMOD[0]}")
    ld = A.newlabel("xfd")
    A(f"s_cmp_ge_u32 s48, 360\ns_cbranch_scc1 {ld}")
    for j in range(4):
        A(f"v_lshl_or_b32 v{XF_R+8+j}, v{XF_R+9+2*j}, 16, v{XF_R+8+2*j}")
    A(f"buffer_store_dwordx4 v[{XF_R+8}:{XF_R+11}], v44, s[64:67], s51 offen {SMOD[0]}")
    A.label(ld)

def gen_rowk(A, name, mode, warm=''):
    kernel_begin(A, name)
    end = A.newlabel("end")
    nwg = 256
    A(f"s_cmp_ge_u32 s2, {nwg}\ns_cbranch_scc1 {end}")
    prof_begin(A)
    fin = A.newlabel("fin")
    A(f"s_load_dwordx2 s[4:5], s[0:1], {KA_WS}")
    A(f"s_load_dwordx2 s[6:7], s[0:1], {KA_X if mode != 2 else KA_OUT}")
    if mode == 0:
        A(f"s_load_dwordx4 s[44:47], s[0:1], {KA_WQKV}")
    A("v_lshrrev_b32 v1, 6, v0")
    A("v_and_b32 v2, 63, v0")
    A("s_waitcnt lgkmcnt(0)")
    srd(A, 8, 4, WS_XP, ACT)
    srd(A, 12, 4, WS_XN, ACT)
    srd(A, 16, 4, WS_PART, PART_B)
    srd(A, 20, 6, 0, ACT)
    A("v_lshrrev_b32 v3, 5, v0")
    A("v_bfe_u32 v4, v0, 3, 2")
    A("v_and_b32 v5, 7, v0")
    A("s_lshr_b32 s24, s2, 1")
    A("s_and_b32 s25, s2, 1")
    A("v_lshlrev_b32 v6, 10, v3")
    A("v_lshl_add_u32 v6, v4, 8, v6")
    A("v_lshl_add_u32 v6, v5, 4, v6")
    A("s_mul_i32 s26, s24, 18432")
    A("s_lshl_b32 s27, s25, 7")
    A("s_add_u32 s26, s26, s27")
    A("v_add_u32 v6, s26, v6")
    A("s_lshl_b32 s27, s2, 3")
    A("v_add_u32 v7, s27, v5")
    A("v_mul_u32_u24 v7, 1152, v7")
    A("v_lshl_add_u32 v7, v3, 6, v7")
    A("v_lshl_add_u32 v7, v4, 3, v7")
    X = 16
    R = 8
    PB = 32
    if mode == 0:
        A(f"buffer_load_dwordx2 v[{R}:{R+1}], v7, s[20:23], 0 offen")
        A(f"buffer_load_dwordx2 v[{R+2}:{R+3}], v7, s[20:23], 0 offen offset:32")
        xf_issue(A)
        for j in range(4):
            unpack_lo(A, X + 2 * j, R + j); unpack_hi(A, X + 2 * j + 1, R + j)
        A(f"buffer_store_dwordx4 v[{R}:{R+3}], v6, s[8:11], 0 offen {SMOD[0]}")
    else:
        A("s_mov_b32 s30, 0")
        for f in range(16):
            A(f"buffer_load_dwordx4 v[{PB+4*f}:{PB+4*f+3}], v6, s[16:19], s30 offen")
            if f < 15: A(f"s_add_u32 s30, s30, {ACT}")
        A(f"buffer_load_dwordx4 v[{R}:{R+3}], v6, s[8:11], 0 offen")
        for j in range(4):
            unpack_lo(A, X + 2 * j, PB + j); unpack_hi(A, X + 2 * j + 1, PB + j)
        for f in range(1, 16):
            for j in range(4):
                unpack_lo(A, 24, PB + 4 * f + j); unpack_hi(A, 25, PB + 4 * f + j)
                A(f"v_add_f32 v{X+2*j}, v{X+2*j}, v24")
                A(f"v_add_f32 v{X+2*j+1}, v{X+2*j+1}, v25")
        for j in range(4):
            A(f"v_cvt_pk_bf16_f32 v24, v{X+2*j}, v{X+2*j+1}")
            unpack_lo(A, X + 2 * j, 24); unpack_hi(A, X + 2 * j + 1, 24)
            unpack_lo(A, 24, R + j); unpack_hi(A, 25, R + j)
            A(f"v_add_f32 v{X+2*j}, v{X+2*j}, v24")
            A(f"v_add_f32 v{X+2*j+1}, v{X+2*j+1}, v25")
            A(f"v_cvt_pk_bf16_f32 v{R+j}, v{X+2*j}, v{X+2*j+1}")
        if mode == 2:
            A(f"buffer_store_dwordx2 v[{R}:{R+1}], v7, s[20:23], 0 offen")
            A(f"buffer_store_dwordx2 v[{R+2}:{R+3}], v7, s[20:23], 0 offen offset:32")
            A(f"s_branch {fin}")
        else:
            A(f"buffer_store_dwordx4 v[{R}:{R+3}], v6, s[8:11], 0 offen {SMOD[0]}")
            for j in range(4):
                unpack_lo(A, X + 2 * j, R + j); unpack_hi(A, X + 2 * j + 1, R + j)
    if mode != 2:
        A("v_mul_u32_u24 v26, 48, v5")
        A("v_lshl_add_u32 v27, v1, 2, v26")
        def xreduce(x, area, res):
            wave_reduce_x8(A, x, 25)
            A("s_mov_b64 exec, 0xff")
            A(f"ds_write_b32 v27, v{x} offset:{area}")
            A("s_mov_b64 exec, -1")
            A("s_waitcnt lgkmcnt(0)")
            A("s_barrier")
            A(f"ds_read_b128 v[32:35], v26 offset:{area}")
            A(f"ds_read_b128 v[36:39], v26 offset:{area+16}")
            A(f"ds_read_b32 v40, v26 offset:{area+32}")
            A(f"v_add_f32 v{res}, v32, v33")
            for j in range(34, 41): A(f"v_add_f32 v{res}, v{res}, v{j}")
            A(f"v_mul_f32 v{res}, 0x3ae38e39, v{res}")
        A(f"v_add_f32 v24, v{X}, v{X+1}")
        for j in range(2, 8): A(f"v_add_f32 v24, v24, v{X+j}")
        xreduce(24, 0, 28)
        A(f"v_sub_f32 v25, v{X}, v28")
        A("v_mul_f32 v24, v25, v25")
        for j in range(1, 8):
            A(f"v_sub_f32 v25, v{X+j}, v28")
            A("v_fmac_f32 v24, v25, v25")
        xreduce(24, 512, 29)
        ln_finish(A, X, 8, 28, 29, 24, 12)
        A(f"buffer_store_dwordx4 v[12:15], v6, s[12:15], 0 offen {SMOD[0]}")
    if mode == 0:
        xf_store(A)
        k0_warm(A, warm)
    A.label(fin)
    prof_end(A)
    A.label(end)
    A("s_endpgm")
    return descriptor(name, 96, 96)

XV = 224
def xreg(mt, ks):
    idx = (ks * 4 + mt) * 4
    return a(idx, 4) if idx < 256 else v(XV + idx - 256, 4)

def tr_addr_regs(A, dst, tiles_expr, lane, T):
    t0, t1, t2 = T, T + 1, T + 2
    A(f"v_lshrrev_b32 v{t0}, 2, v{lane}")
    A(f"v_and_b32 v{t1}, 6, v{t0}")
    A(f"v_lshlrev_b32 v{t1}, 4, v{t1}")
    A(f"v_lshlrev_b32 v{t0}, 7, v{t0}")
    A(f"v_and_b32 v{t2}, 3, v{lane}")
    A(f"v_lshl_add_u32 v{t0}, v{t2}, 3, v{t0}")
    for d, te in zip(dst, tiles_expr):
        if isinstance(te, int):
            A(f"v_xor_b32 v{d}, {te*32}, v{t1}")
        else:
            A(f"v_xor_b32 v{d}, s{te[1]}, v{t1}")
        A(f"v_add_u32 v{d}, v{d}, v{t0}")

def dma_voff(A, dst, lane, pitch, T):
    A(f"v_lshrrev_b32 v{T}, 3, v{lane}")
    A(f"v_and_b32 v{T+1}, 6, v{T}")
    A(f"v_xor_b32 v{T+1}, v{T+1}, v{lane}")
    A(f"v_and_b32 v{T+1}, 7, v{T+1}")
    A(f"v_mul_u32_u24 v{dst}, {pitch}, v{T}")
    A(f"v_lshl_add_u32 v{dst}, v{T+1}, 4, v{dst}")

def gen_k1(A, name):
    kernel_begin(A, name)
    end = A.newlabel("end")
    A(f"s_cmp_ge_u32 s2, 216\ns_cbranch_scc1 {end}")
    prof_begin(A)
    fin = A.newlabel("fin")
    A(f"s_load_dwordx2 s[4:5], s[0:1], {KA_WS}")
    A(f"s_load_dwordx2 s[6:7], s[0:1], {KA_WQKV}")
    A("v_lshrrev_b32 v1, 6, v0")
    A("v_and_b32 v2, 63, v0")
    A("v_readfirstlane_b32 s24, v1")
    A("s_and_b32 s25, s2, 7")
    A("s_lshr_b32 s26, s2, 3")
    dma_voff(A, 3, 2, 3456, 10)
    A("v_lshlrev_b32 v4, 4, v2")
    tr_addr_regs(A, [5, 6, 7, 8], [0, 1, 2, 3], 2, 10)
    A("v_and_b32 v10, 15, v2\nv_mul_u32_u24 v9, 3456, v10\nv_lshrrev_b32 v10, 4, v2\nv_lshl_add_u32 v9, v10, 3, v9")
    A("s_waitcnt lgkmcnt(0)")
    srd(A, 8, 4, WS_XN, ACT)
    srd(A, 12, 6, 0, 576 * 3456)
    srd(A, 16, 4, WS_QKV, QKV_B)
    A("s_lshl_b32 s27, s25, 4\ns_lshl_b32 s28, s24, 2\ns_add_u32 s27, s27, s28")
    for m in range(4):
        A(f"s_add_u32 s28, s27, {m}")
        A(f"s_mul_i32 s{32+m}, s28, 18432")
    A("s_mul_i32 s28, s24, 27648\ns_lshl_b32 s29, s26, 7\ns_add_u32 s28, s28, s29")
    A("s_lshl_b32 s30, s24, 10")
    A("s_mul_i32 s31, s27, 55296\ns_add_u32 s31, s31, s29")
    dtok = {}
    def issue(ks):
        A(f"s_add_u32 m0, s30, {ks*4096}")
        dtok[ks] = A("buffer_load_dwordx4 v3, s[12:15], s28 offen lds")
        if ks < 17: A(f"s_add_u32 s28, s28, {32*3456}")
        for m in range(4):
            A(f"buffer_load_dwordx4 {xreg(m, ks)}, v4, s[8:11], s{32+m} offen offset:{(ks%4)*1024}")
            if ks % 4 == 3: A(f"s_add_u32 s{32+m}, s{32+m}, 4096")
    for ks in range(12): issue(ks)
    ACC = 16
    FR = 80
    nfr = 0
    def read_frag(ks, t):
        nonlocal nfr
        sl = FR + 4 * (nfr % 8); nfr += 1
        off = ks * 4096
        if off >= 32768 and ks >= 9: off -= 36864
        A(f"ds_read_b64_tr_b16 v[{sl}:{sl+1}], v{5+t} offset:{off}")
        A(f"ds_read_b64_tr_b16 v[{sl+2}:{sl+3}], v{5+t} offset:{off+2048}")
        return sl
    seq = [(ks, t) for ks in range(18) for t in range(4)]
    slots = {}
    def pre(i):
        if i >= len(seq): return
        ks, t = seq[i]
        if t == 0 and ks % 3 == 0:
            A.wait(vm=dtok[ks + 2])
            A("s_barrier")
            if ks == 9:
                for j in range(4): A(f"v_add_u32 v{5+j}, 36864, v{5+j}")
        slots[i] = read_frag(ks, t)
    D = 4
    for i in range(D): pre(i)
    for i, (ks, t) in enumerate(seq):
        if t == 0 and ks + 12 < 18: issue(ks + 12)
        for m in range(4):
            acc = ACC + (t * 4 + m) * 4
            c = "0" if ks == 0 else v(acc, 4)
            A(f"v_mfma_f32_16x16x32_bf16 {v(acc,4)}, {v(slots[i],4)}, {xreg(m, ks)}, {c}")
            if m == 0: pre(i + D)
    for m in range(4):
        for t in range(4):
            acc = ACC + (t * 4 + m) * 4
            A(f"v_cvt_pk_bf16_f32 v{acc}, v{acc}, v{acc+1}")
            A(f"v_cvt_pk_bf16_f32 v{acc+1}, v{acc+2}, v{acc+3}")
            A(f"buffer_store_dwordx2 v[{acc}:{acc+1}], v9, s[16:19], s31 offen offset:{32*t}")
        if m < 3: A("s_add_u32 s31, s31, 55296")
    A.label(fin)
    prof_end(A)
    A.label(end)
    A("s_endpgm")
    return descriptor(name, 512, 256)

def gen_k3(A, name, D=4, BI=12, store_mods="", NSLOT=40, l2pf=0, dbg="", NPRO=40, RATE=2, gupf=()):
    kernel_begin(A, name)
    end = A.newlabel("end")
    A(f"s_cmp_ge_u32 s2, 256\ns_cbranch_scc1 {end}")
    prof_begin(A)
    fin = A.newlabel("fin")
    A(f"s_load_dwordx2 s[4:5], s[0:1], {KA_WS}")
    A(f"s_load_dwordx4 s[40:43], s[0:1], {KA_WG}")
    A(f"s_load_dwordx2 s[44:45], s[0:1], {KA_WD}")
    A("v_lshrrev_b32 v1, 6, v0")
    A("v_and_b32 v2, 63, v0")
    A("v_readfirstlane_b32 s24, v1")
    A("s_and_b32 s25, s2, 7\ns_lshl_b32 s25, s25, 1\ns_lshr_b32 s26, s2, 3\ns_and_b32 s27, s26, 1\ns_add_u32 s25, s25, s27")
    A("s_lshr_b32 s26, s26, 1")
    A("s_and_b32 s28, s24, 1")
    A("s_lshr_b32 s29, s24, 1")
    V_GU, V_D, V_L16, V_HG = 3, 4, 5, 6
    V_W = 8
    V_H = 14
    V_XR = 17
    V_HW = 20
    TMP = 24
    P = 32
    E = 96
    T = 128
    T1 = T
    FR = 160
    T2 = 192
    NFR = 8
    dma_voff(A, V_GU, 2, 9216, TMP)
    dma_voff(A, V_D, 2, 1152, TMP)
    A(f"v_lshlrev_b32 v{V_L16}, 4, v2")
    A(f"v_lshrrev_b32 v{TMP}, 2, v2")
    A(f"v_lshrrev_b32 v{TMP+1}, 3, v2\nv_and_b32 v{TMP+1}, 2, v{TMP+1}")
    A(f"v_xor_b32 v{TMP+1}, v{TMP+1}, v2\nv_and_b32 v{TMP+1}, 3, v{TMP+1}")
    A(f"v_mul_u32_u24 v{V_HG}, 9216, v{TMP}\nv_lshl_add_u32 v{V_HG}, v{TMP+1}, 4, v{V_HG}")
    A("s_lshl_b32 s30, s29, 6\ns_add_u32 s31, s30, 32")
    tr_addr_regs(A, [V_W, V_W + 1], [('s', 30), ('s', 31)], 2, TMP)
    A(f"v_lshrrev_b32 v{TMP}, 2, v2\nv_lshlrev_b32 v{TMP}, 6, v{TMP}")
    A(f"v_bfe_u32 v{TMP+1}, v2, 4, 1\nv_xor_b32 v{TMP+1}, s29, v{TMP+1}\nv_lshl_add_u32 v{TMP}, v{TMP+1}, 5, v{TMP}")
    A(f"v_and_b32 v{TMP+1}, 3, v2\nv_lshl_add_u32 v{V_H}, v{TMP+1}, 3, v{TMP}")
    A(f"s_lshl_b32 s30, s28, 12\nv_add_u32 v{V_XR}, s30, v{V_L16}")
    for w in (1, 2):
        A(f"v_add_u32 v{V_W+2*w}, {65536*w}, v{V_W}\nv_add_u32 v{V_W+2*w+1}, {65536*w}, v{V_W+1}")
        A(f"v_add_u32 v{V_H+w}, {65536*w}, v{V_H}\nv_add_u32 v{V_XR+w}, {65536*w}, v{V_XR}")
    A(f"s_lshl_b32 s30, s24, 12\ns_add_u32 s30, s30, 65536\nv_add_u32 v{V_HW}, s30, v{V_L16}")
    A(f"s_lshl_b32 s30, s29, 3\nv_add_u32 v{V_HW+1}, s30, v{V_XR+1}")
    A("s_mov_b32 s33, 0xffff0000")
    A("s_lshl_b32 s32, s24, 10")
    A("s_waitcnt lgkmcnt(0)")
    srd(A, 8, 4, WS_XN, ACT)
    srd(A, 12, 40, 0, 576 * 9216)
    srd(A, 16, 42, 0, 576 * 9216)
    srd(A, 20, 44, 0, 4608 * 1152)
    srd(A, 48, 4, WS_PART, PART_B)
    A("s_cmp_eq_u32 s29, 0\ns_cselect_b32 s52, s40, s42\ns_cselect_b32 s53, s41, s43")
    A(f"s_mov_b32 s54, {576*9216}\ns_mov_b32 s55, 0x20000")
    A("s_mul_i32 s35, s25, 576\ns_lshl_b32 s30, s27, 6")
    A(f"s_mul_i32 s31, s24, {8*9216}\ns_add_u32 s30, s30, s31\nv_add_u32 v{V_GU}, s30, v{V_GU}")
    A("s_xor_b32 s30, s27, 1\ns_lshl_b32 s30, s30, 9")
    A(f"s_mul_i32 s31, s28, {16*9216}\ns_add_u32 s30, s30, s31\nv_add_u32 v{V_HG}, s30, v{V_HG}")
    A("s_mul_i32 s30, s25, 288\ns_lshl_b32 s31, s24, 3\ns_add_u32 s30, s30, s31")
    A("s_lshl_b32 s31, s27, 5\ns_add_u32 s37, s30, s31\ns_mul_i32 s37, s37, 1152")
    A("s_xor_b32 s31, s27, 1\ns_lshl_b32 s31, s31, 8\ns_add_u32 s38, s30, s31\ns_mul_i32 s38, s38, 1152")
    A("s_lshl_b32 s30, s26, 3\ns_add_u32 s31, s30, s24\ns_mul_i32 s39, s31, 18432")
    A(f"s_lshl_b32 s31, s28, 2\ns_add_u32 s31, s30, s31\ns_mul_i32 s31, s31, 18432\ns_mul_i32 s46, s25, {ACT}\ns_add_u32 s46, s46, s31")
    A("s_lshl_b32 s31, s29, 10\ns_add_u32 s46, s46, s31")

    SK = 60; SD = 78
    A(f"s_mov_b32 s{SK}, s35")
    for ks in range(1, 18): A(f"s_add_u32 s{SK+ks}, s{SK+ks-1}, {32*9216}")
    A(f"s_mov_b32 s{SD}, s37")
    for kk in range(1, 8): A(f"s_add_u32 s{SD+kk}, s{SD+kk-1}, {32*1152}")
    A(f"s_mov_b32 s{SD+8}, s38")
    items = []
    for g in range(4):
        for ks in range(18):
            for it in range(4):
                items.append(dict(unit=('G' if it < 2 else 'U', g, ks), kind='W', tile=it & 1,
                                  acc=[P + (it * 4 + m) * 4 for m in range(4)], b=[xreg(m, ks) for m in range(4)],
                                  first=ks == 0, last=ks == 17, grp=('g', g), it=it))
    hg0 = len(items)
    for ks in range(18):
        for it in range(2):
            items.append(dict(unit=('HG', ks), kind='H', tile=it, acc=[P + (it * 4 + m) * 4 for m in range(4)],
                              b=[xreg(m, ks) for m in range(4)], first=ks == 0, last=ks == 17, grp=('h',), it=it))
    p20 = len(items)
    order = [(0, kk) for kk in range(6)] + [(1, kk) for kk in range(6)] + [(0, 6), (0, 7), (1, 6), (1, 7)] + [(2, kk) for kk in range(6)] + \
            [(0, 8), (1, 8), (2, 6), (2, 7), (2, 8)] + [(ng, kk) for ng in range(3, 9) for kk in range(9)]
    sets = [P + 32, E, P]
    for (ng, kk) in order:
        for tt in range(2):
            items.append(dict(unit=('D', ng, kk), kind='W', tile=tt, acc=[sets[ng % 3] + (m * 2 + tt) * 4 for m in range(4)],
                              b=[xreg(m, kk) for m in range(4)], first=kk == 0, last=kk == 8, grp=('n', ng), it=tt))
    N = len(items)
    bpos = [0, 4, 8, 12, 18] + list(range(24, N, BI))
    def interval_of_read(i):
        k = 0
        for j, p in enumerate(bpos):
            if p <= i: k = j
        return k
    def rel_after(i):
        for k, p in enumerate(bpos):
            if p - D >= i: return k
        return 10 ** 6
    units = {}
    ulist = []
    def touch(u, ri, ci, pair=False):
        if u not in units:
            units[u] = dict(fr=interval_of_read(ri), rel=0, pair=pair, name=u); ulist.append(u)
        units[u]['rel'] = max(units[u]['rel'], rel_after(ci))
    xread_at = {}
    for i, itx in enumerate(items):
        if i < 72 - 4:
            ks = i // 4 + 1; m = i % 4
            if i == 0: touch(('X', 0), 0, 1, True)
            touch(itx['unit'], i, i)
            touch(('X', ks), i, ks * 4 + 1, True)
            xread_at[i] = (ks, m)
        else:
            touch(itx['unit'], i, i)
    uidx = {u: i for i, u in enumerate(ulist)}
    ulist = sorted(ulist, key=lambda u: (units[u]['fr'], uidx[u]))
    HBASE = NSLOT - 18
    assert HBASE * 4096 >= 65536 and (NSLOT * 4096 - 65536) <= 2 * 65536
    slot_deadline = {}
    for g in range(5):
        endi = (g + 1) * 72 if g < 4 else p20
        k = interval_of_read(endi + D)
        for sidx in range(4 if g < 4 else 2):
            slot_deadline[HBASE + 4 * g + sidx] = k
    hread_q = [(kk, m) for kk in range(9) for m in range(4)]
    hread_done = set()
    h_release = rel_after(p20 + 2 * order.index((0, 8)) + 1)
    free_at = {sl: 0 for sl in range(NSLOT)}
    issue_in = {}
    nxt = 0
    for k in range(-1, len(bpos)):
        lst = []
        while nxt < len(ulist):
            u = units[ulist[nxt]]
            kk_ = max(k, 0)
            def ok(sl):
                if free_at[sl] > kk_: return False
                if sl in slot_deadline and kk_ < h_release and u['rel'] > slot_deadline[sl]: return False
                return True
            if u['pair']:
                c = [sl for sl in range(0, NSLOT, 2) if ok(sl) and ok(sl + 1)]
            else:
                c = [sl for sl in range(NSLOT) if ok(sl)]
            if not c: break
            c.sort(key=lambda sl: (0 if (sl in slot_deadline and kk_ < h_release) else 1, free_at[sl], sl))
            sl = c[0]
            u['slot'] = sl
            free_at[sl] = u['rel']
            if u['pair']: free_at[sl + 1] = u['rel']
            assert k < u['fr'], (u, k)
            lst.append(u); nxt += 1
        issue_in[k] = lst
    assert nxt == len(ulist)
    lead = {}
    for k, lst in issue_in.items():
        for u in lst: lead.setdefault(u['fr'] - k, 0); lead[u['fr'] - k] += 1
    A.raw(f"; lead histogram (intervals): {sorted(lead.items())}")

    cur_int = [-1]
    def dma_parts(u):
        n = u['name']; sl = u['slot']
        def one(voff, srdn, sreg, imm, lds, pre=()):
            if lds < imm:
                pre = [f"s_add_u32 s47, s{sreg}, {imm}"]; sreg = 47; imm = 0
            return (list(pre) + [f"s_add_u32 m0, s32, {(lds - imm) & 0xffffffff}"],
                    f"buffer_load_dwordx4 v{voff}, s[{srdn}:{srdn+3}], s{sreg} offen offset:{imm} lds", u)
        if n[0] == 'X':
            return [one(V_L16, 8, 47, 0, sl * 4096, [f"s_add_u32 s47, s39, {n[1]*1024}"]),
                    one(V_L16, 8, 47, 0, sl * 4096 + 4096, [f"s_add_u32 s47, s39, {n[1]*1024 + 4*18432}"])]
        elif n[0] in 'GU':
            return [one(V_GU, 12 if n[0] == 'G' else 16, SK + n[2], n[1] * 128, sl * 4096)]
        elif n[0] == 'HG':
            return [one(V_HG, 52, SK + n[1], 0, sl * 4096)]
        else:
            return [one(V_D, 20, SD + n[2], n[1] * 128, sl * 4096)]
    def dma_pre(p):
        if 'nodma' in dbg and cur_int[0] >= 0: return
        for x in p[0]: A(x)
    def dma_ld(p):
        if 'nodma' in dbg and cur_int[0] >= 0:
            p[2]['tok'] = -1; return
        p[2]['tok'] = A(p[1])
    def dma(p):
        dma_pre(p); dma_ld(p)
    def lds_rd(base, addr, stride=1):
        w = addr >> 16
        return base + w * stride, addr & 0xffff
    dma_q = []
    hw_tok = {}; hw_int = {}; hw_cnt = {}
    slots = {}
    def pre(i):
        if i >= N: return
        if i in bpos:
            k = bpos.index(i)
            while dma_q and dma_q[0][2]['fr'] <= k:
                A.raw("; late dma"); dma(dma_q.pop(0))
            toks = [u['tok'] for u in units.values() if u['fr'] == k]
            if toks: A.wait(vm=max(toks))
            if hw_tok: A.wait(lg=max(hw_tok.values()))
            if not ('nobar' in dbg and k > 0): A("s_barrier")
            cur_int[0] = k
            for u in issue_in[k]: dma_q.extend(dma_parts(u))
        itx = items[i]; u = units[itx['unit']]
        sl = FR + 4 * (i % NFR); slots[i] = sl
        if itx['kind'] == 'W':
            r, off = lds_rd(V_W + itx['tile'], u['slot'] * 4096, 2)
            A(f"ds_read_b64_tr_b16 v[{sl}:{sl+1}], v{r} offset:{off}")
            A(f"ds_read_b64_tr_b16 v[{sl+2}:{sl+3}], v{r} offset:{off+2048}")
        else:
            r, off = lds_rd(V_H, u['slot'] * 4096 + itx['tile'] * 2048)
            A(f"ds_read_b64_tr_b16 v[{sl}:{sl+1}], v{r} offset:{off}")
            A(f"ds_read_b64_tr_b16 v[{sl+2}:{sl+3}], v{r} offset:{off+1024}")
    def extra_reads(i):
        if i in xread_at:
            ks, m = xread_at[i]
            r, off = lds_rd(V_XR, units[('X', ks)]['slot'] * 4096 + m * 1024)
            A(f"ds_read_b128 {xreg(m, ks)}, v{r} offset:{off}")
    def h_read(i):
        if not hread_q: return False
        kk, m = hread_q[0]
        g = kk >> 1
        if i <= hg0 + 2 * kk + 1: return False
        if hw_cnt.get(g, 0) < 4 or hw_int[g] >= cur_int[0]: return False
        hread_q.pop(0); hread_done.add((kk, m))
        addr = (HBASE + 4 * g) * 4096 + ((kk & 1) * 8192 if kk < 8 else 0) + m * 1024
        r, off = lds_rd(V_XR, addr)
        A(f"ds_read_b128 {xreg(m, kk)}, v{r} offset:{off}")
        return True
    defer = []
    timed = {}
    def sched_epilogue(i, itx):
        gk = itx['grp']
        if gk[0] == 'g' and gk[1] > 0: assert hw_cnt.get(gk[1] - 1, 0) == 4
        for m in range(4):
            acc = itx['acc'][m]
            at = i * 4 + m + 7
            if gk[0] == 'g':
                it = itx['it']
                d = T + (16 if it >= 2 else 0) + m * 4 + (it & 1) * 2
            elif gk[0] == 'h':
                d = T2 + (16 if itx['it'] else 0) + m * 4
            else:
                d = acc - itx['it'] * 4 + itx['it'] * 2
            timed.setdefault(at, []).append(f"v_cvt_pk_bf16_f32 v{d}, v{acc}, v{acc+1}")
            timed.setdefault(at, []).append(f"v_cvt_pk_bf16_f32 v{d+1}, v{acc+2}, v{acc+3}")
        lastit = {'g': 3, 'h': 1, 'n': 1}[gk[0]]
        if itx['it'] == lastit:
            timed.setdefault(i * 4 + 3 + 8, []).append(('defer', gk))
    def push_defer(gk):
        if gk[0] in 'gh':
            g = gk[1] if gk[0] == 'g' else 4
            nd = 4 if g < 4 else 2
            T = T1 if g < 4 else T2
            for m in range(4):
                for j in range(nd):
                    gr = T + m * 4 + j; ur = gr + 16
                    t0 = TMP + (j & 1) * 4
                    defer.extend([f"v_pk_max_i16 v{gr}, v{gr}, 0",
                                  f"v_lshlrev_b32 v{t0+1}, 16, v{ur}", f"v_and_b32 v{t0+3}, s33, v{ur}",
                                  f"v_lshlrev_b32 v{t0}, 16, v{gr}", f"v_and_b32 v{t0+2}, s33, v{gr}",
                                  f"v_mul_f32 v{t0}, v{t0}, v{t0+1}", f"v_mul_f32 v{t0+2}, v{t0+2}, v{t0+3}",
                                  f"v_cvt_pk_bf16_f32 v{gr}, v{t0}, v{t0+2}"])
                off = (HBASE + 4 * g) * 4096 + m * 1024 - 65536
                if g < 4: defer.append(('hw', g, off, f"ds_write_b128 v{{r}}, v[{T+m*4}:{T+m*4+3}] offset:{{o}}", V_HW))
                else: defer.append(('hw', g, off, f"ds_write_b64 v{{r}}, v[{T+m*4}:{T+m*4+1}] offset:{{o}}", V_HW + 1))
        else:
            ng = gk[1]
            for m in range(4):
                b = sets[ng % 3] + m * 8
                defer.append(f"s_add_u32 s56, s46, {m*18432 + ng*2048}")
                defer.append(f"buffer_store_dwordx4 v[{b}:{b+3}], v{V_L16}, s[48:51], s56 offen {store_mods}")
            defer.append(('done', ng))
    hw_hi = [False]
    stored = set()
    def emit_defer(x):
        if isinstance(x, tuple) and x[0] == 'done':
            stored.add(x[1])
        elif isinstance(x, tuple):
            _, g, off, fmt, r = x
            if off >= 65536 and not hw_hi[0]:
                A(f"v_add_u32 v{V_HW}, 65536, v{V_HW}\nv_add_u32 v{V_HW+1}, 65536, v{V_HW+1}"); hw_hi[0] = True
            if hw_hi[0]: off -= 65536
            assert 0 <= off < 65536
            assert cur_int[0] >= slot_deadline[HBASE + 4 * g]
            hw_tok[g] = A(fmt.format(r=r, o=off)); hw_int[g] = cur_int[0]; hw_cnt[g] = hw_cnt.get(g, 0) + 1
        elif 'noepi' in dbg and x.startswith('v_'): pass
        elif 'nost' in dbg and x.startswith('buffer_store'): pass
        else:
            A(x)
    for u in issue_in[-1]: dma_q.extend(dma_parts(u))
    for _ in range(min(NPRO, len(dma_q))): dma(dma_q.pop(0))
    for i in range(D):
        pre(i)
        if i == 0:
            for m in range(4):
                r, off = lds_rd(V_XR, units[('X', 0)]['slot'] * 4096 + m * 1024)
                A(f"ds_read_b128 {xreg(m, 0)}, v{r} offset:{off}")
        extra_reads(i)
    half = None
    over = 0
    nd = 0
    for i, itx in enumerate(items):
        if i in (1, 72, 216, p20, p20 + 81): stamp(A)
        for (at, l0, nl) in gupf:
            if i != at: continue
            assert nl in (1, 2)
            A(f"v_and_b32 v{T2+1}, 127, v0\nv_min_u32 v{T2+1}, {36*nl-1}, v{T2+1}")
            if nl == 2: A(f"v_and_b32 v{T2+2}, 1, v{T2+1}\nv_lshrrev_b32 v{T2+1}, 1, v{T2+1}\nv_mul_u32_u24 v{T2+1}, 9216, v{T2+1}\nv_lshl_add_u32 v{T2+1}, v{T2+2}, 7, v{T2+1}")
            else: A(f"v_mul_u32_u24 v{T2+1}, 9216, v{T2+1}")
            A(f"s_mul_i32 s30, s26, {36*9216}\ns_add_u32 s30, s30, s35\ns_and_b32 s30, s30, 0xffffff80")
            if l0 < 4: A(f"s_lshl_b32 s31, s27, 7\ns_add_u32 s30, s30, s31\ns_add_u32 s30, s30, {l0*128}")
            else: A("s_xor_b32 s31, s27, 1\ns_lshl_b32 s31, s31, 9\ns_add_u32 s30, s30, s31")
            A(f"buffer_load_dword v{T2+3}, v{T2+1}, s[52:55], s30 offen")
        if l2pf and i == l2pf:
            A(f"v_min_u32 v{T2+1}, 161, v0\nv_lshlrev_b32 v{T2+1}, 7, v{T2+1}")
            A(f"s_mul_i32 s30, s25, 288\ns_mul_i32 s31, s26, 18\ns_add_u32 s30, s30, s31\ns_mul_i32 s30, s30, 1152")
            A(f"buffer_load_dword v{T2}, v{T2+1}, s[20:23], s30 offen")
        if itx['last']: sched_epilogue(i, itx)
        for m in range(4):
            acc = itx['acc'][m]
            c = "0" if itx['first'] else v(acc, 4)
            if itx['grp'][0] == 'n':
                assert (itx['unit'][2], m) in hread_done, (i, itx['unit'], m)
                assert itx['grp'][1] < 3 or itx['grp'][1] - 3 in stored
            A(f"v_mfma_f32_16x16x32_bf16 {v(acc,4)}, {v(slots[i],4)}, {itx['b'][m]}, {c}")
            n0 = A.ninstr
            if half is not None:
                dma_ld(half); half = None
            for x in timed.pop(i * 4 + m, []):
                if isinstance(x, tuple): push_defer(x[1])
                else: A(x)
            if m == 0: pre(i + D)
            if m == 1:
                nb = min([p for p in bpos if p > i + D] + [10 ** 6])
                left = nb - (i + D)
                nd = min(RATE, -(-len(dma_q) // max(left, 1))) if dma_q else 0
                if nd:
                    half = dma_q.pop(0); dma_pre(half); nd -= 1
            if m == 3 and nd > 0 and dma_q and (i + 1 + D) not in bpos:
                half = dma_q.pop(0); dma_pre(half); nd -= 1
            if m == 2: extra_reads(i + D)
            cap = 2 if m < 3 else 1
            while A.ninstr - n0 < cap and h_read(i): pass
            while defer and A.ninstr - n0 < cap: emit_defer(defer.pop(0))
            over += max(0, A.ninstr - n0 - cap)
    for k in sorted(timed):
        for x in timed[k]:
            if isinstance(x, tuple): push_defer(x[1])
            else: A(x)
    while defer: emit_defer(defer.pop(0))
    A.label(fin)
    prof_end(A)
    A.label(end)
    A("s_endpgm")
    return descriptor(name, 512, 256)

import struct
def f32hex(x): return "0x%08x" % struct.unpack("<I", struct.pack("<f", x))[0]
def attn_core(A, VA, KP, VOFF, Q, ROWG, SMASK, SP, R):
    B = [R + 10 * i for i in range(4)]
    LG = R + 40
    OA = R + 48
    T = R + 66
    A(f"s_mov_b32 s{SP}, 0x05040100\ns_mov_b32 s{SP+1}, 0x07060302\ns_mov_b32 s{SP+2}, {f32hex(1.4426950408889634)}")
    def load9(dst, byteoff):
        A(f"v_add_u32 v{T+7}, {byteoff}, v{VA}")
        for d in range(0, 8, 2):
            A(f"ds_read2_b32 v[{dst+d}:{dst+d+1}], v{T+7} offset0:{d} offset1:{d+1}")
        A(f"ds_read_b32 v{dst+8}, v{T+7} offset:32")
    def koff(j): return (14 - 2 * j) * KP
    for j in range(4): load9(B[j], koff(j))
    for j in range(0, 8, 2):
        b0, b1 = B[j % 4], B[(j + 1) % 4]
        for d in range(9):
            for (jj, b) in ((j, b0), (j + 1, b1)):
                A(f"v_dot2_f32_bf16 v{LG+jj}, v{Q+d}, v{b+d}, " + ("0" if d == 0 else f"v{LG+jj}"))
        if j < 4:
            load9(b0, koff(j + 4)); load9(b1, koff(j + 5))
        else:
            load9(b0, koff(j - 4) + VOFF); load9(b1, koff(j - 3) + VOFF)
    for j in range(8): round_bf16(A, LG + j)
    for j in range(8): A(f"v_mul_f32 v{LG+j}, {f32hex(18 ** -0.5)}, v{LG+j}")
    for j in range(8): round_bf16(A, LG + j)
    nm = A.newlabel("nomask")
    A(f"s_cmp_eq_u32 s{SMASK}, 0\ns_cbranch_scc1 {nm}")
    A(f"v_mov_b32 v{T}, 0xce6e0000")
    for j in range(1, 8):
        A(f"v_cmp_gt_u32 vcc, {2*j}, v{ROWG}")
        A(f"v_cndmask_b32 v{LG+j}, v{LG+j}, v{T}, vcc")
    A.label(nm)
    A(f"v_max3_f32 v{T}, v{LG}, v{LG+1}, v{LG+2}")
    A(f"v_max3_f32 v{T+1}, v{LG+3}, v{LG+4}, v{LG+5}")
    A(f"v_max3_f32 v{T}, v{T}, v{LG+6}, v{LG+7}")
    A(f"v_max_f32 v{T}, v{T}, v{T+1}")
    for j in range(8): A(f"v_sub_f32 v{LG+j}, v{LG+j}, v{T}")
    for j in range(8): A(f"v_mul_f32 v{LG+j}, s{SP+2}, v{LG+j}")
    for j in range(8): A(f"v_exp_f32 v{LG+j}, v{LG+j}")
    A(f"v_add_f32 v{T}, v{LG}, v{LG+1}\nv_add_f32 v{T+1}, v{LG+2}, v{LG+3}\nv_add_f32 v{T+2}, v{LG+4}, v{LG+5}\nv_add_f32 v{T+3}, v{LG+6}, v{LG+7}")
    A(f"v_add_f32 v{T}, v{T}, v{T+1}\nv_add_f32 v{T+2}, v{T+2}, v{T+3}\nv_add_f32 v{T}, v{T}, v{T+2}")
    A(f"v_rcp_f32 v{T}, v{T}")
    for j in range(8): A(f"v_mul_f32 v{LG+j}, v{LG+j}, v{T}")
    for p in range(4): A(f"v_cvt_pk_bf16_f32 v{LG+p}, v{LG+2*p}, v{LG+2*p+1}")
    for p in range(4):
        b0, b1 = B[(2 * p) % 4], B[(2 * p + 1) % 4]
        for d in range(9):
            t = T + (d % 3) * 2
            A(f"v_perm_b32 v{t}, v{b1+d}, v{b0+d}, s{SP}")
            A(f"v_perm_b32 v{t+1}, v{b1+d}, v{b0+d}, s{SP+1}")
            A(f"v_dot2_f32_bf16 v{OA+2*d}, v{t}, v{LG+p}, " + ("0" if p == 0 else f"v{OA+2*d}"))
            A(f"v_dot2_f32_bf16 v{OA+2*d+1}, v{t+1}, v{LG+p}, " + ("0" if p == 0 else f"v{OA+2*d+1}"))
        if p < 2:
            load9(b0, koff(2 * p + 4) + VOFF); load9(b1, koff(2 * p + 5) + VOFF)
    for d in range(9): A(f"v_cvt_pk_bf16_f32 v{Q+d}, v{OA+2*d}, v{OA+2*d+1}")

def wave_reduce_q(A, x, t):
    A(f"v_mov_b32 v{t}, v{x}")
    A(f"v_permlane16_swap_b32 v{x}, v{t}")
    A(f"v_add_f32 v{x}, v{x}, v{t}")
    A(f"v_mov_b32 v{t}, v{x}")
    A(f"v_permlane32_swap_b32 v{x}, v{t}")
    A(f"v_add_f32 v{x}, v{x}, v{t}")

K2_O = 73728
K2_ST = K2_O + 16 * 1168
K2_LDS = K2_ST + 2 * 768
def gen_k2(A, name, NPF=15, RING=26):
    kernel_begin(A, name)
    end = A.newlabel("end")
    A(f"s_cmp_ge_u32 s2, 128\ns_cbranch_scc1 {end}")
    prof_begin(A)
    fin = A.newlabel("fin")
    A(f"s_load_dwordx2 s[4:5], s[0:1], {KA_WS}")
    A("v_lshrrev_b32 v1, 6, v0")
    A("v_and_b32 v2, 63, v0")
    A("v_readfirstlane_b32 s24, v1")
    A("v_mul_u32_u24 v3, 7282, v0\nv_lshrrev_b32 v3, 20, v3")
    A("v_mul_u32_u24 v4, 144, v3\nv_sub_u32 v4, v0, v4")
    A("v_lshlrev_b32 v4, 4, v4\nv_add_u32 v4, 1152, v4")
    A("s_lshl_b32 s25, s2, 4")
    A("s_sub_u32 s26, s25, 14")
    A("v_add_u32 v3, s26, v3")
    A("s_lshl_b32 s27, s24, 10")
    A("v_lshlrev_b32 v5, 4, v2")
    A("v_lshrrev_b32 v6, 5, v0")
    A("v_and_b32 v7, 31, v0")
    A("v_mul_u32_u24 v7, 36, v7")
    A("v_add_u32 v8, s25, v6")
    A("v_mul_u32_u24 v9, 3456, v8\nv_add_u32 v9, v9, v7")
    A("v_mul_u32_u24 v10, 2304, v6\nv_add_u32 v10, v10, v7")
    A(f"v_mul_u32_u24 v11, 1168, v6\nv_add_u32 v11, v11, v7\nv_add_u32 v11, {K2_O}, v11")
    A(f"v_and_b32 v12, 15, v2\nv_mul_u32_u24 v13, 1168, v12\nv_and_b32 v14, 48, v2\nv_add_u32 v13, v13, v14\nv_add_u32 v13, {K2_O}, v13")
    A(f"v_mul_u32_u24 v14, 48, v12\nv_add_u32 v14, {K2_ST}, v14")
    A("v_lshl_add_u32 v15, v1, 2, v14")
    A("s_cmp_eq_u32 s2, 0\ns_cselect_b32 s28, 1, 0")
    A("s_waitcnt lgkmcnt(0)")
    srd(A, 8, 4, WS_QKV, QKV_B)
    srd(A, 12, 4, WS_WOF, WOF_B)
    srd(A, 16, 4, WS_XP, ACT)
    srd(A, 20, 4, WS_XN, ACT)
    Q = 16; RES = 26; W = 34; AR = 94; ACC = 152; OB = 140
    assert W + 4 * NPF <= AR and W + 4 * RING <= OB
    for it in range(8):
        A(f"v_max_i32 v{AR}, 0, v3")
        A(f"v_mul_u32_u24 v{AR}, 3456, v{AR}")
        A(f"v_add_u32 v{AR}, v{AR}, v4")
        A(f"s_add_u32 m0, s27, {it*9216}")
        if it < 7: A("v_add_u32 v3, 4, v3")
        A(f"buffer_load_dwordx4 v{AR}, s[8:11], 0 offen lds")
    A(f"buffer_load_dwordx4 v[{Q}:{Q+3}], v9, s[8:11], 0 offen")
    A(f"buffer_load_dwordx4 v[{Q+4}:{Q+7}], v9, s[8:11], 0 offen offset:16")
    tq = A(f"buffer_load_dword v{Q+8}, v9, s[8:11], 0 offen offset:32")
    A("s_mul_i32 s29, s2, 18432\ns_lshl_b32 s30, s24, 11\ns_add_u32 s29, s29, s30")
    A(f"buffer_load_dwordx4 v[{RES}:{RES+3}], v5, s[16:19], s29 offen")
    A(f"buffer_load_dwordx4 v[{RES+4}:{RES+7}], v5, s[16:19], s29 offen offset:1024")
    A("s_mul_i32 s30, s24, 73728\ns_add_u32 s31, s30, 36864")
    def wload(f):
        ks, p, tt = f >> 2, (f >> 1) & 1, f & 1
        r = W + 4 * (f % RING)
        A(f"buffer_load_dwordx4 v[{r}:{r+3}], v5, s[12:15], s{30+p} offen offset:{(ks & 1)*2048 + tt*1024}")
        if (ks & 1) and tt: A(f"s_add_u32 s{30+p}, s{30+p}, 4096")
    for f in range(NPF): wload(f)
    A.wait(vm=tq)
    A("s_barrier")
    skip = A.newlabel("skip")
    A(f"s_cmp_eq_u32 s24, 8\ns_cbranch_scc1 {skip}")
    attn_core(A, 10, 2304, 1152, Q, 8, 28, 40, AR)
    for d in range(0, 8, 2):
        A(f"ds_write2_b32 v11, v{Q+d}, v{Q+d+1} offset0:{d} offset1:{d+1}")
    A(f"ds_write_b32 v11, v{Q+8} offset:32")
    A.label(skip)
    for f in range(NPF, RING): wload(f)
    A("s_waitcnt lgkmcnt(0)")
    A("s_barrier")
    def oread(ks):
        r = OB + 4 * (ks % 3)
        A(f"ds_read_b128 v[{r}:{r+3}], v13 offset:{ks*64}")
    oread(0); oread(1)
    for ks in range(18):
        if ks + 2 < 18: oread(ks + 2)
        for t in range(4):
            f = ks * 4 + t
            r = W + 4 * (f % RING); acc = ACC + 4 * t; ob = OB + 4 * (ks % 3)
            A(f"v_mfma_f32_16x16x32_bf16 v[{acc}:{acc+3}], v[{r}:{r+3}], v[{ob}:{ob+3}], " + ("0" if ks == 0 else f"v[{acc}:{acc+3}]"))
            if f + RING < 72: wload(f + RING)
    X = ACC; T = W
    for j in range(8):
        A(f"v_cvt_pk_bf16_f32 v{X+2*j}, 0, v{X+2*j}\nv_cvt_pk_bf16_f32 v{X+2*j+1}, 0, v{X+2*j+1}")
        unpack_lo(A, T, RES + j); unpack_hi(A, T + 1, RES + j)
        A(f"v_add_f32 v{X+2*j}, v{X+2*j}, v{T}\nv_add_f32 v{X+2*j+1}, v{X+2*j+1}, v{T+1}")
        A(f"v_cvt_pk_bf16_f32 v{RES+j}, v{X+2*j}, v{X+2*j+1}")
        unpack_lo(A, X + 2 * j, RES + j); unpack_hi(A, X + 2 * j + 1, RES + j)
    A(f"buffer_store_dwordx4 v[{RES}:{RES+3}], v5, s[16:19], s29 offen")
    A(f"buffer_store_dwordx4 v[{RES+4}:{RES+7}], v5, s[16:19], s29 offen offset:1024")
    def xreduce(x, area, res):
        wave_reduce_q(A, x, T + 1)
        A("s_mov_b64 exec, 0xffff")
        A(f"ds_write_b32 v15, v{x} offset:{area}")
        A("s_mov_b64 exec, -1")
        A("s_waitcnt lgkmcnt(0)")
        A("s_barrier")
        A(f"ds_read_b128 v[{T+4}:{T+7}], v14 offset:{area}")
        A(f"ds_read_b128 v[{T+8}:{T+11}], v14 offset:{area+16}")
        A(f"ds_read_b32 v{T+12}, v14 offset:{area+32}")
        A(f"v_add_f32 v{res}, v{T+4}, v{T+5}")
        for j in range(6, 13): A(f"v_add_f32 v{res}, v{res}, v{T+j}")
        A(f"v_mul_f32 v{res}, 0x3ae38e39, v{res}")
    A(f"v_add_f32 v{T}, v{X}, v{X+1}")
    for j in range(2, 16): A(f"v_add_f32 v{T}, v{T}, v{X+j}")
    xreduce(T, 0, T + 2)
    A(f"v_sub_f32 v{T+1}, v{X}, v{T+2}\nv_mul_f32 v{T}, v{T+1}, v{T+1}")
    for j in range(1, 16):
        A(f"v_sub_f32 v{T+1}, v{X+j}, v{T+2}\nv_fmac_f32 v{T}, v{T+1}, v{T+1}")
    xreduce(T, 768, T + 3)
    ln_finish(A, X, 16, T + 2, T + 3, T, T + 16)
    A(f"buffer_store_dwordx4 v[{T+16}:{T+19}], v5, s[20:23], s29 offen")
    A(f"buffer_store_dwordx4 v[{T+20}:{T+23}], v5, s[20:23], s29 offen offset:1024")
    A.label(fin)
    prof_end(A)
    A.label(end)
    A("s_endpgm")
    return descriptor(name, 168, 168)

K1C_LDS = 147456
QP = 240
OST = 40960
def attn_core2(A, VA, VT, VQ, Q, ROWG, SMASK, SP, R):
    def KR(j): return R + 18 * j
    LG = R + 144; OA = LG + 8; T = OA + 18
    A(f"s_mov_b32 s{SP}, 0x05040100\ns_mov_b32 s{SP+1}, 0x07060302\ns_mov_b32 s{SP+2}, {f32hex(1.4426950408889634)}")
    A(f"ds_read_b128 v[{Q}:{Q+3}], v{VA} offset:{14*QP}\nds_read_b128 v[{Q+4}:{Q+7}], v{VA} offset:{14*QP+16}\nds_read_b32 v{Q+8}, v{VQ}")
    def ldk(j):
        o = (14 - 2 * j) * QP
        A(f"ds_read_b128 v[{KR(j)}:{KR(j)+3}], v{VA} offset:{o+64}\nds_read_b128 v[{KR(j)+4}:{KR(j)+7}], v{VA} offset:{o+80}\nds_read_b64 v[{KR(j)+16}:{KR(j)+17}], v{VT} offset:{o}")
    def ldv(j):
        o = (14 - 2 * j) * QP
        A(f"ds_read_b128 v[{KR(j)+8}:{KR(j)+11}], v{VA} offset:{o+128}\nds_read_b128 v[{KR(j)+12}:{KR(j)+15}], v{VA} offset:{o+144}")
    for j in range(4): ldk(j)
    for j0 in (0, 4):
        for d in range(9):
            for j in range(j0, j0 + 4):
                kr = KR(j) + (d if d < 8 else 16)
                A(f"v_dot2_f32_bf16 v{LG+j}, v{Q+d}, v{kr}, " + ("0" if d == 0 else f"v{LG+j}"))
            if j0 == 0 and d in (1, 3, 5, 7): ldk(4 + d // 2)
            if j0 == 4 and d < 8: ldv(d)
    for j in range(8): round_bf16(A, LG + j)
    for j in range(8): A(f"v_mul_f32 v{LG+j}, {f32hex(18 ** -0.5)}, v{LG+j}")
    for j in range(8): round_bf16(A, LG + j)
    nm = A.newlabel("nomask")
    A(f"s_cmp_eq_u32 s{SMASK}, 0\ns_cbranch_scc1 {nm}")
    A(f"v_mov_b32 v{T}, 0xce6e0000")
    for j in range(1, 8):
        A(f"v_cmp_gt_u32 vcc, {2*j}, v{ROWG}")
        A(f"v_cndmask_b32 v{LG+j}, v{LG+j}, v{T}, vcc")
    A.label(nm)
    A(f"v_max3_f32 v{T}, v{LG}, v{LG+1}, v{LG+2}")
    A(f"v_max3_f32 v{T+1}, v{LG+3}, v{LG+4}, v{LG+5}")
    A(f"v_max3_f32 v{T}, v{T}, v{LG+6}, v{LG+7}")
    A(f"v_max_f32 v{T}, v{T}, v{T+1}")
    for j in range(8): A(f"v_sub_f32 v{LG+j}, v{LG+j}, v{T}")
    for j in range(8): A(f"v_mul_f32 v{LG+j}, s{SP+2}, v{LG+j}")
    for j in range(8): A(f"v_exp_f32 v{LG+j}, v{LG+j}")
    A(f"v_add_f32 v{T}, v{LG}, v{LG+1}\nv_add_f32 v{T+1}, v{LG+2}, v{LG+3}\nv_add_f32 v{T+2}, v{LG+4}, v{LG+5}\nv_add_f32 v{T+3}, v{LG+6}, v{LG+7}")
    A(f"v_add_f32 v{T}, v{T}, v{T+1}\nv_add_f32 v{T+2}, v{T+2}, v{T+3}\nv_add_f32 v{T}, v{T}, v{T+2}")
    A(f"v_rcp_f32 v{T}, v{T}")
    def vreg(j, d): return KR(j) + (8 + d if d < 8 else 17)
    def preg(p, d, h): return KR(2 * p + h) + (d if d < 8 else 16)
    def perms(p):
        for d in range(9):
            A(f"v_perm_b32 v{preg(p, d, 0)}, v{vreg(2*p+1, d)}, v{vreg(2*p, d)}, s{SP}")
            A(f"v_perm_b32 v{preg(p, d, 1)}, v{vreg(2*p+1, d)}, v{vreg(2*p, d)}, s{SP+1}")
    perms(0)
    for j in range(8): A(f"v_mul_f32 v{LG+j}, v{LG+j}, v{T}")
    for p in range(4): A(f"v_cvt_pk_bf16_f32 v{LG+p}, v{LG+2*p}, v{LG+2*p+1}")
    for p in range(4):
        if p: perms(p)
        for d in range(9):
            for h in range(2):
                A(f"v_dot2_f32_bf16 v{OA+2*d+h}, v{preg(p, d, h)}, v{LG+p}, " + ("0" if p == 0 else f"v{OA+2*d+h}"))
    for d in range(9): A(f"v_cvt_pk_bf16_f32 v{Q+d}, v{OA+2*d}, v{OA+2*d+1}")

def gen_k1c(A, name, name2, warm="g", AH=5, GS=2):
    body = A.newlabel("body")
    kernel_begin(A, name2)
    A(f"s_mov_b32 s86, 0\ns_branch {body}")
    kernel_begin(A, name)
    A("s_mov_b32 s86, 1")
    A.label(body)
    end = A.newlabel("end")
    A(f"s_cmp_ge_u32 s2, 256\ns_cbranch_scc1 {end}")
    prof_begin(A)
    fin = A.newlabel("fin")
    A(f"s_load_dwordx2 s[4:5], s[0:1], {KA_WS}")
    A(f"s_load_dwordx4 s[40:43], s[0:1], {KA_WG}")
    A(f"s_load_dwordx2 s[44:45], s[0:1], {KA_WD}")
    A("v_lshrrev_b32 v1, 6, v0")
    A("v_and_b32 v2, 63, v0")
    A("v_readfirstlane_b32 s24, v1")
    A("s_and_b32 s25, s2, 7\ns_lshr_b32 s26, s2, 3")
    A("s_lshr_b32 s27, s25, 1\ns_lshl_b32 s27, s27, 2\ns_and_b32 s28, s26, 3\ns_add_u32 s27, s27, s28")
    A("s_and_b32 s28, s25, 1\ns_lshl_b32 s28, s28, 3\ns_lshr_b32 s29, s26, 2\ns_add_u32 s28, s28, s29")
    A("v_lshlrev_b32 v3, 4, v2")
    A("s_lshl_b32 s30, s24, 10")
    A(f"s_lshl_b32 s31, s27, 3\ns_lshl_b32 s32, s24, 1\ns_add_u32 s32, s32, s31\ns_mov_b32 s46, s32\ns_mul_i32 s32, s32, 18432\ns_add_u32 s32, s32, {WS_XN}\ns_add_u32 s33, s32, 18432")
    A(f"s_max_u32 s31, s31, 1\ns_sub_u32 s31, s31, 1\ns_mul_i32 s31, s31, 18432\ns_add_u32 s31, s31, {WS_XN}")
    A(f"s_mul_i32 s35, s28, {126*1024}\ns_add_u32 s35, s35, s30\ns_add_u32 s35, s35, {WS_WQF}")
    A("s_add_u32 s34, s35, 4096")
    A("s_cmp_eq_u32 s24, 3\ns_cselect_b32 s34, s31, s34\ns_cselect_b32 s29, 1, 7\ns_lshl_b32 s29, s29, 10")
    A("s_waitcnt lgkmcnt(0)")
    srd(A, 8, 4, 0, WS_END)
    srd(A, 16, 4, WS_O, ACT + GR_B)
    RN = AH + 1
    XB = 152
    assert XB + RN * 8 <= 240
    def xr(t, ks): return v(XB + ((ks % RN) * 2 + t) * 4, 4)
    dtok = {}
    def issue_parts(ks):
        def p0():
            A(f"s_add_u32 m0, s30, {ks*8192}")
            if ks: A("s_add_u32 s35, s35, 7168")
            A("buffer_load_dwordx4 v3, s[8:11], s35 offen lds")
        def p1():
            A(f"s_add_u32 m0, s30, {ks*8192+4096}")
            if ks: A("s_add_u32 s34, s34, s29")
            dtok[ks] = A("buffer_load_dwordx4 v3, s[8:11], s34 offen lds")
        def px(t):
            A(f"buffer_load_dwordx4 {xr(t, ks)}, v3, s[8:11], s{32+t} offen offset:{(ks%4)*1024}")
            if ks % 4 == 3: A(f"s_add_u32 s{32+t}, s{32+t}, 4096")
        return [p0, p1, lambda: px(0), lambda: px(1)]
    for ks in range(AH):
        for p in issue_parts(ks): p()
    A("v_add_u32 v4, 0x10000, v3\nv_add_u32 v5, 0x20000, v3")
    A("s_add_u32 s31, s30, 2048\nv_add_u32 v6, s31, v3\nv_add_u32 v7, s31, v4\nv_add_u32 v8, s31, v5")
    ACC = 16; FR = 80
    def rd(ks, t):
        if ks >= 18: return
        if t == 0 and (ks == 0 or (ks - 1) % GS == 0):
            A.wait(vm=dtok[min(ks + GS - 1, 17) if ks else 0])
            A("s_barrier")
        r = FR + (ks & 1) * 36 + 4 * t
        off = (ks % 8) * 8192
        if t < 8: A(f"ds_read_b128 v[{r}:{r+3}], v{3 + ks // 8} offset:{off + t*1024}")
        else: A(f"ds_read_b128 v[{r}:{r+3}], v{6 + ks // 8} offset:{off}")
    for t in range(9): rd(0, t)
    stamp(A)
    E = 240
    extra = [f"v_mov_b32 v{E}, -1", f"v_mov_b32 v{E+1}, -1", f"v_mov_b32 v{E+2}, -1", f"v_mov_b32 v{E+3}, -1",
              f"s_mul_i32 s31, s2, 384", f"s_add_u32 s31, s31, {ACT}", f"v_lshlrev_b32 v{E+4}, 4, v0",
              f"v_cmp_gt_u32 vcc, 24, v0\ns_and_saveexec_b64 s[38:39], vcc\nbuffer_store_dwordx4 v[{E}:{E+3}], v{E+4}, s[16:19], s31 offen\ns_mov_b64 exec, s[38:39]"]
    if warm:
        extra += ["s_cmp_lt_u32 s24, 2\ns_cselect_b32 s48, s40, s42\ns_cselect_b32 s49, s41, s43", f"s_mov_b32 s50, {576*9216}", "s_mov_b32 s51, 0x20000"]
        extra += f"""v_and_b32 v{E+4}, 127, v0
v_min_u32 v{E+4}, 71, v{E+4}
v_lshrrev_b32 v{E+5}, 2, v{E+4}
v_mul_u32_u24 v{E+5}, 1152, v{E+5}
v_and_b32 v{E+6}, 1, v{E+4}
v_lshl_add_u32 v{E+5}, v{E+6}, 7, v{E+5}
v_bfe_u32 v{E+6}, v{E+4}, 1, 1
v_mul_u32_u24 v{E+6}, 640, v{E+6}
v_add_u32 v{E+5}, v{E+5}, v{E+6}
s_mul_i32 s31, s2, {18*1152}""".split("\n")
        nw = A.newlabel("nowarm")
        extra.append(f"s_cmp_eq_u32 s86, 0\ns_cbranch_scc1 {nw}\nbuffer_load_dword v{E+6}, v{E+5}, s[48:51], s31 offen\n{nw}:")
    W0, W1, W2, VA, VT, VQ, VO, RG, M_, Q_ = 9, 10, 11, 12, 13, 14, 15, E + 9, E + 10, E + 11
    early = f"""v_and_b32 v{M_}, 15, v2
v_lshrrev_b32 v{Q_}, 4, v2
v_mul_u32_u24 v{W0}, {QP}, v{M_}
v_lshl_add_u32 v{W0}, v{Q_}, 3, v{W0}
s_mul_i32 s31, s24, {32*QP}
s_add_u32 s31, s31, {16*QP}
v_add_u32 v{W1}, s31, v{W0}
s_lshl_b32 s31, s24, 5
v_add_u32 v{W2}, s31, v{W0}
v_and_b32 v{RG}, 31, v2
v_add_u32 v{RG}, s31, v{RG}
v_lshrrev_b32 v{VO}, 5, v2
v_mul_u32_u24 v{VQ}, {QP}, v{RG}
v_lshl_add_u32 v{VA}, v{VO}, 5, v{VQ}
v_add_u32 v{VA}, {2*QP}, v{VA}
v_lshl_add_u32 v{VT}, v{VO}, 3, v{VQ}
v_add_u32 v{VT}, {2*QP+192}, v{VT}
v_lshl_add_u32 v{VQ}, v{VO}, 2, v{VQ}
v_add_u32 v{VQ}, {16*QP+208}, v{VQ}
v_mul_u32_u24 v{VO}, 36, v{VO}
v_mul_u32_u24 v{E+12}, 72, v{RG}
v_add3_u32 v{VO}, v{VO}, v{E+12}, s47
s_lshl_b32 s31, s27, 7
v_add_u32 v{RG}, s31, v{RG}
s_cmp_eq_u32 s27, 0\ns_cselect_b32 s36, 1, 0""".split("\n")
    early = [f"s_mov_b32 s47, {OST}"] + early[:-2] + [early[-2] + "\n" + early[-1]]
    RDS = [0, 2, 4, 6, 8, 10, 12, 14, 15]
    for ks in range(18):
        q = issue_parts(ks + AH) if ks + AH < 18 else []
        n = 0
        for t in range(8):
            r = FR + (ks & 1) * 36 + 4 * t
            hx = v(FR + (ks & 1) * 36 + 28, 4)
            lst = [(t * 2, r, xr(0, ks)), (t * 2 + 1, r, xr(1, ks))] if t < 7 else [(14, r + 4, hx)]
            if t == 6: lst.append((15, r, hx))
            for (ai, ar, xb) in lst:
                acc = ACC + 4 * ai
                A(f"v_mfma_f32_16x16x32_bf16 v[{acc}:{acc+3}], v[{ar}:{ar+3}], {xb}, " + ("0" if ks == 0 else f"v[{acc}:{acc+3}]"))
                if n in RDS: rd(ks + 1, RDS.index(n))
                elif q and n in (1, 5, 9, 13): q.pop(0)()
                elif early:
                    A(early.pop(0))
                    if early: A(early.pop(0))
                elif ks + AH >= 18 and extra:
                    if 's_cbranch' in extra[0]:
                        if ks < 17: n += 1; continue
                        A.wait_all(lg=False)
                    A(extra.pop(0))
                n += 1
    assert not early
    while extra: A(extra.pop(0))
    stamp(A)
    A("s_barrier")
    for ai in range(16):
        acc = ACC + 4 * ai
        A(f"v_cvt_pk_bf16_f32 v{acc}, v{acc}, v{acc+1}\nv_cvt_pk_bf16_f32 v{acc+1}, v{acc+2}, v{acc+3}")
        if ai < 14: A(f"ds_write_b64 v{W1}, v[{acc}:{acc+1}] offset:{(ai & 1)*16*QP + (ai >> 1)*32}")
        elif ai == 14: A(f"ds_write_b64 v{W2}, v[{acc}:{acc+1}] offset:64")
        else: A(f"ds_write_b64 v{W0}, v[{acc}:{acc+1}] offset:{6*32}")
    A("s_waitcnt lgkmcnt(0)")
    A("s_barrier")
    stamp(A)
    Q = 16
    attn_core2(A, VA, VT, VQ, Q, RG, 36, 60, 26)
    for d in range(0, 8, 2):
        A(f"ds_write2_b32 v{VO}, v{Q+d}, v{Q+d+1} offset0:{d} offset1:{d+1}")
    A(f"ds_write_b32 v{VO}, v{Q+8} offset:32")
    stamp(A)
    A("s_and_b32 s31, s28, 1\ns_lshl_b32 s37, s31, 3")
    A(f"s_mul_i32 s38, s24, {32*72}\ns_add_u32 s38, s38, {OST}\ns_add_u32 s39, s38, s37")
    A(f"v_mul_u32_u24 v4, 72, v{M_}\nv_lshl_add_u32 v4, v{Q_}, 4, v4\nv_add_u32 v4, s39, v4")
    A("s_xor_b32 s39, s31, 1\ns_lshl_b32 s39, s39, 6\ns_add_u32 s39, s39, s38")
    A("v_mul_u32_u24 v5, 72, v2\nv_add_u32 v5, s39, v5")
    A("s_waitcnt lgkmcnt(0)")
    A(f"ds_read2_b64 v[32:35], v4 offset0:0 offset1:1")
    A(f"ds_read2_b64 v[36:39], v4 offset0:{16*9} offset1:{16*9+1}")
    A("ds_read_b64 v[40:41], v5")
    A("s_mul_i32 s38, s28, 72\ns_add_u32 s38, s38, s37\ns_lshl_b32 s38, s38, 4\ns_mul_i32 s39, s46, 18432\ns_add_u32 s38, s38, s39\ns_add_u32 s39, s38, 18432")
    A("s_mul_i32 s37, s31, 1272\ns_add_u32 s47, s38, 1024\ns_sub_u32 s47, s47, s37")
    A(f"v_mul_u32_u24 v6, 18432, v{Q_}\nv_lshl_add_u32 v6, v{M_}, 4, v6")
    A(f"buffer_store_dwordx4 v[32:35], v3, s[16:19], s38 offen {SMOD[0]}")
    A(f"buffer_store_dwordx4 v[36:39], v3, s[16:19], s39 offen {SMOD[0]}")
    A("s_mov_b32 exec_hi, 0")
    A("buffer_store_dwordx2 v[40:41], v6, s[16:19], s47 offen")
    A.label(fin)
    prof_end(A)
    A.label(end)
    A("s_endpgm")
    return descriptor(name, 256, 256) + descriptor(name2, 256, 256)

K2D_LDS = 110592
def gen_k2d(A, name, AH=4, D=8, warm='ud', NP=3):
    kernel_begin(A, name)
    end = A.newlabel("end")
    A(f"s_cmp_ge_u32 s2, 256\ns_cbranch_scc1 {end}")
    prof_begin(A)
    fin = A.newlabel("fin")
    main = A.newlabel("main")
    A(f"s_cmp_lt_u32 s2, 192\ns_cbranch_scc1 {main}")
    A(f"s_load_dwordx4 s[40:43], s[0:1], {KA_WG}")
    A(f"s_load_dwordx2 s[44:45], s[0:1], {KA_WD}")
    A("v_lshlrev_b32 v2, 7, v0\nv_add_u32 v3, 0x8000, v2\nv_min_u32 v4, 135, v0\nv_lshlrev_b32 v4, 7, v4\nv_add_u32 v4, 0x10000, v4")
    A(f"s_sub_u32 s24, s2, 192\ns_mul_i32 s24, s24, {648*128}")
    A("s_waitcnt lgkmcnt(0)")
    for i, c in enumerate("gud"):
        if c in warm:
            srd(A, 8, 40 + 2 * i, 0, 576 * 9216)
            for j in range(3): A(f"buffer_load_dword v{8+3*i+j}, v{2+j}, s[8:11], s24 offen")
    A(f"s_branch {fin}")
    A.label(main)
    A.reset_state()
    A(f"s_load_dwordx2 s[4:5], s[0:1], {KA_WS}")
    A("v_lshrrev_b32 v1, 6, v0")
    A("v_and_b32 v2, 63, v0")
    A("v_readfirstlane_b32 s24, v1")
    A("s_and_b32 s25, s2, 7\ns_lshr_b32 s26, s2, 3")
    A("s_mul_i32 s27, s26, 43\ns_lshr_b32 s27, s27, 8")
    A("s_mul_i32 s28, s27, 6\ns_sub_u32 s28, s26, s28")
    A("s_lshl_b32 s25, s25, 2\ns_add_u32 s27, s27, s25")
    A("s_lshl_b32 s29, s27, 2\ns_add_u32 s29, s29, s24")
    A("v_lshlrev_b32 v3, 4, v2\nv_add_u32 v4, 36864, v3\nv_add_u32 v5, 36864, v4")
    A("s_lshl_b32 s30, s24, 10")
    A("s_mul_i32 s32, s28, 110592\ns_add_u32 s32, s32, s30\ns_add_u32 s33, s32, 36864\ns_add_u32 s34, s33, 36864")
    A("s_mul_i32 s35, s29, 18432")
    A("s_mul_i32 s36, s28, 3072\ns_add_u32 s36, s36, s35")
    A("s_waitcnt lgkmcnt(0)")
    srd(A, 8, 4, WS_O, ACT + GR_B)
    srd(A, 12, 4, WS_WOF, WOF_B)
    srd(A, 16, 4, WS_XP, ACT)
    srd(A, 20, 4, WS_XN, ACT)
    OB = 16; RES = 88; ACC = 100; FR = 124
    dtok = {}
    def issue_parts(k2):
        def pd(p):
            A(f"s_add_u32 m0, s30, {p*36864 + k2*4096}")
            if k2: A(f"s_add_u32 s{32+p}, s{32+p}, 4096")
            dtok[k2] = A(f"buffer_load_dwordx4 v3, s[12:15], s{32+p} offen lds")
        def po(ks):
            A(f"buffer_load_dwordx4 v[{OB+4*ks}:{OB+4*ks+3}], v3, s[8:11], s35 offen offset:{(ks%4)*1024}")
            if ks % 4 == 3: A("s_add_u32 s35, s35, 4096")
        def pr(p):
            A(f"buffer_load_dwordx4 v[{RES+4*p}:{RES+4*p+3}], v3, s[16:19], s36 offen offset:{p*1024}")
        if k2 == 9: return [lambda: pr(0), lambda: pr(1), lambda: pr(2)]
        if k2 > 9: return []
        return [lambda: pd(0), lambda: pd(1), lambda: pd(2), lambda: po(2 * k2), lambda: po(2 * k2 + 1)]
    for k2 in range(AH):
        for p in issue_parts(k2): p()
    A(f"v_lshlrev_b32 v6, 3, v2\nv_and_b32 v7, 0xff, v6\nv_add_u32 v7, 512, v7")
    A(f"s_mul_i32 s41, s29, 768\ns_add_u32 s41, s41, {ACT}\ns_lshl_b32 s37, s28, 7\ns_add_u32 s37, s37, s41")
    seq = [(ks, p, tt) for ks in range(18) for p in range(3) for tt in range(2)]
    NF = 12
    def rd(i):
        if i >= len(seq): return
        ks, p, tt = seq[i]
        if p == 0 and tt == 0 and ks % 2 == 0:
            A.wait(vm=dtok[ks // 2])
            A("s_barrier")
        r = FR + 4 * (i % NF)
        A(f"ds_read_b128 v[{r}:{r+3}], v{3+p} offset:{ks*2048 + tt*1024}")
    for i in range(D): rd(i)
    stamp(A)
    q = []
    for i, (ks, p, tt) in enumerate(seq):
        if i % 12 == 0: q = issue_parts(i // 12 + AH)
        r = FR + 4 * (i % NF); acc = ACC + (p * 2 + tt) * 4
        A(f"v_mfma_f32_16x16x32_bf16 v[{acc}:{acc+3}], v[{r}:{r+3}], v[{OB+4*ks}:{OB+4*ks+3}], " + ("0" if ks == 0 else f"v[{acc}:{acc+3}]"))
        rd(i + D)
        if q and i % 2 == 1: q.pop(0)()
    stamp(A)
    X = ACC; T = 16
    for j in range(12):
        A(f"v_cvt_pk_bf16_f32 v{X+2*j}, 0, v{X+2*j}\nv_cvt_pk_bf16_f32 v{X+2*j+1}, 0, v{X+2*j+1}")
        unpack_lo(A, T, RES + j); unpack_hi(A, T + 1, RES + j)
        A(f"v_add_f32 v{X+2*j}, v{X+2*j}, v{T}\nv_add_f32 v{X+2*j+1}, v{X+2*j+1}, v{T+1}")
        A(f"v_cvt_pk_bf16_f32 v{RES+j}, v{X+2*j}, v{X+2*j+1}")
        unpack_lo(A, X + 2 * j, RES + j); unpack_hi(A, X + 2 * j + 1, RES + j)
    A(f"v_add_f32 v{T}, v{X}, v{X+1}\nv_add_f32 v{T+1}, v{X+2}, v{X+3}")
    for j in range(4, 24, 2): A(f"v_add_f32 v{T}, v{T}, v{X+j}\nv_add_f32 v{T+1}, v{T+1}, v{X+j+1}")
    A(f"v_add_f32 v{T}, v{T}, v{T+1}")
    wave_reduce_q(A, T, T + 2)
    A(f"v_mul_f32 v{T+2}, {f32hex(1/96)}, v{T}")
    A(f"v_sub_f32 v{T+3}, v{X}, v{T+2}\nv_sub_f32 v{T+4}, v{X+1}, v{T+2}\nv_mul_f32 v{T+1}, v{T+3}, v{T+3}\nv_mul_f32 v{T+5}, v{T+4}, v{T+4}")
    for j in range(2, 24, 2):
        A(f"v_sub_f32 v{T+3}, v{X+j}, v{T+2}\nv_sub_f32 v{T+4}, v{X+j+1}, v{T+2}\nv_fmac_f32 v{T+1}, v{T+3}, v{T+3}\nv_fmac_f32 v{T+5}, v{T+4}, v{T+4}")
    A(f"v_add_f32 v{T+1}, v{T+1}, v{T+5}")
    wave_reduce_q(A, T + 1, T + 2)
    A("s_mov_b64 exec, 0xffff")
    A(f"buffer_store_dwordx2 v[{T}:{T+1}], v6, s[8:11], s37 offen sc1")
    A("s_mov_b64 exec, -1")
    G = 24
    PR = G + 12
    A("s_mov_b32 s42, -1\ns_mov_b32 s43, 0")
    A("s_mov_b32 s38, 0")
    lp = A.newlabel("poll"); dn = A.newlabel("polld")
    def pl(i): A(f"buffer_load_dwordx2 v[{PR+4*i}:{PR+4*i+1}], v6, s[8:11], s41 offen sc1\nbuffer_load_dwordx2 v[{PR+4*i+2}:{PR+4*i+3}], v7, s[8:11], s41 offen sc1")
    A.auto = False
    for i in range(NP - 1): pl(i)
    A.label(lp)
    hs = [A.newlabel("ph") for i in range(NP)]
    for i in range(NP):
        pl((i + NP - 1) % NP)
        A(f"s_waitcnt vmcnt({2*NP-2})")
        A(f"v_max_u32 v{T+2}, v{PR+4*i+1}, v{PR+4*i+3}")
        A(f"v_cmp_eq_u32 vcc, -1, v{T+2}")
        A(f"s_add_u32 s38, s38, 1")
        A(f"s_cbranch_vccz {hs[i]}")
    A(f"s_cmp_lt_u32 s38, 0x40000\ns_cbranch_scc1 {lp}")
    for i in range(NP - 1, -1, -1):
        A.label(hs[i])
        for j in range(2): A(f"v_mov_b32 v{G+j}, v{PR+4*i+j}")
        for j in range(2, 4): A(f"v_cndmask_b32 v{G+j}, 0, v{PR+4*i+j}, s[42:43]")
        if i: A(f"s_branch {dn}")
    A.label(dn)
    A.auto = True
    A.pend = {}
    stamp(A)
    for p in range(3):
        A(f"buffer_store_dwordx4 v[{RES+4*p}:{RES+4*p+3}], v3, s[16:19], s36 offen offset:{p*1024} {SMOD[0]}")
    A(f"v_add_f32 v{T+2}, v{G}, v{G+2}\nv_add_f32 v{T+1}, v{G+1}, v{G+3}")
    wave_reduce_q(A, T + 2, T + 4)
    A(f"v_mul_f32 v{T+2}, 0x3ae38e39, v{T+2}")
    A(f"s_mov_b32 s39, {f32hex(1/96)}\ns_mov_b32 s40, {f32hex(96.0)}")
    A(f"v_fma_f32 v{T+3}, v{G}, s39, -v{T+2}\nv_fma_f32 v{T+4}, v{G+2}, s39, -v{T+2}")
    A(f"v_cndmask_b32 v{T+4}, 0, v{T+4}, s[42:43]")
    A(f"v_mul_f32 v{T+3}, v{T+3}, v{T+3}\nv_fmac_f32 v{T+3}, v{T+4}, v{T+4}")
    A(f"v_fma_f32 v{T+3}, v{T+3}, s40, v{T+1}")
    wave_reduce_q(A, T + 3, T + 4)
    A(f"v_mul_f32 v{T+3}, 0x3ae38e39, v{T+3}")
    ln_finish(A, X, 24, T + 2, T + 3, T, G)
    for p in range(3):
        A(f"buffer_store_dwordx4 v[{G+4*p}:{G+4*p+3}], v3, s[20:23], s36 offen offset:{p*1024} {SMOD[0]}")
    A.label(fin)
    prof_end(A)
    A.label(end)
    A("s_endpgm")
    return descriptor(name, 176, 176)
```

```python
import sys
sys.path.insert(0, "dev")
from gen import *
NAME = "interleave_layers__sliding_local_dilated__glu_gated_reglu__prompt"
def build_all(**kw):
    A = Asm()
    SMOD[0] = kw.get('smod', '')
    hdr = open(f"cdna_kernels/{NAME}.s.ref").read().split("; Override")[0]
    K = dict(k0=("k0_kernel", 256, 576, 1024), k1=("k1c_kernel", 256, 256, K1C_LDS), k1b=("k1d_kernel", 256, 256, K1C_LDS), k2=("k2d_kernel", 256, 256, K2D_LDS), k2b=("k2d_kernel", 192, 256, K2D_LDS), k3=("k3_kernel", 256, 256, 163840),
             k4a=("k4a_kernel", 256, 576, 1024), k4b=("k4b_kernel", 256, 576, 1024))
    launches = [K[x] for x in "k0 k1 k2 k3 k4a k1b k2b k3 k4b".split()]
    descs = []
    A.raw('.amdgcn_target "amdgcn-amd-amdhsa--gfx950"\n.text')
    descs.append(gen_rowk(A, "k0_kernel", 0, **kw.get("k0", {})))
    descs.append(gen_rowk(A, "k4a_kernel", 1))
    descs.append(gen_rowk(A, "k4b_kernel", 2))
    descs.append(gen_k1c(A, "k1c_kernel", "k1d_kernel", **kw.get("k1", {})))
    descs.append(gen_k2d(A, "k2d_kernel", **kw.get("k2", {})))
    n0 = A.nops_inserted; i0 = A.ninstr
    descs.append(gen_k3(A, "k3_kernel", **kw.get('k3', {})))
    print("k3 nops", A.nops_inserted - n0, "instr", A.ninstr - i0)
    txt = hdr + "".join(f"; @launch kernel={k} grid=({g},1,1) block=({b},1,1) lds={l}\n" for k, g, b, l in launches)
    txt += A.text() + '.section .rodata,"a"\n' + "".join(descs)
    return txt
if __name__ == "__main__":
    out = sys.argv[1] if len(sys.argv) > 1 else f"cdna_kernels/{NAME}.s"
    if len(sys.argv) > 2 and sys.argv[2].startswith("prof"): PROF[0] = 2 if sys.argv[2] == "prof2" else 1
    kw = eval(sys.argv[3]) if len(sys.argv) > 3 else {}
    open(out, "w").write(build_all(**kw))
```
